```python
import torch

def _softmax(x, axis=-1):
    return torch.softmax(x, dim=axis)
def _gelu(x):
    return torch.nn.functional.gelu(x, approximate="tanh")
def _silu(x):
    return torch.nn.functional.silu(x)
def _sigmoid(x):
    return torch.sigmoid(x)
def _layernorm(x, axis=-1, eps=1e-5):
    m = x.mean(dim=axis, keepdim=True)
    v = x.var(dim=axis, keepdim=True, unbiased=False)
    return (x - m) / torch.sqrt(v + eps)
def _scatter_add(tgt, idx, src, axis=0):
    return tgt.clone().index_add_(axis, idx, src)
def _segment_sum(src, seg, n):
    out = torch.zeros((n,) + src.shape[1:], dtype=src.dtype)
    return out.index_add_(0, seg, src)
def _pad(x, pw):
    flat = tuple(v for pair in reversed(pw) for v in pair)
    return torch.nn.functional.pad(x, flat)

kernel_name = 'parallel_sum__gqa_block_cached__dense_activation_squared_relu__decode'

def setup_inputs():

    _w = (lambda a: (lambda t: t.to(torch.bfloat16) if t.is_floating_point() else t)(torch.as_tensor(a)))
    def _A_setup():
        B, Sq, D = 2, 1, 1024
        Hq, Hkv, Sk, Dh = 32, 4, 32768, 128
        assert Hq % Hkv == 0, (Hq, Hkv)
        return {
            "x": _w((lambda *s: torch.randn(*s, dtype=torch.bfloat16) * 0.05)(B, Sq, D)),
            "k_cache": _w((lambda *s: torch.randn(*s, dtype=torch.bfloat16) * 3.2)(B, Hkv, Sk, Dh)),
            "v_cache": _w((lambda *s: torch.randn(*s, dtype=torch.bfloat16) * 3.2)(B, Hkv, Sk, Dh)),
            "wq": _w((lambda *s: torch.randn(*s, dtype=torch.bfloat16) * 3.2)(D, Hq * Dh) * (D ** -0.5)),
            "wo": _w((lambda *s: torch.randn(*s, dtype=torch.bfloat16) * 3.2)(Hq * Dh, D) * ((Hq * Dh) ** -0.5)),
        }
    _A_in = _A_setup()

    def _B_setup():
        B, S, D, F = 2, 1, 1024, 3584
        return {
            "x": _w((lambda *s: torch.randn(*s, dtype=torch.bfloat16) * 0.05)(B, S, D)),
            "w1": _w((lambda *s: torch.randn(*s, dtype=torch.bfloat16) * 0.05)(D, F)),
            "b1": _w((lambda *s: torch.randn(*s, dtype=torch.bfloat16) * 0.8)(F)),
            "w2": _w((lambda *s: torch.randn(*s, dtype=torch.bfloat16) * 0.05)(F, D)),
            "b2": _w((lambda *s: torch.randn(*s, dtype=torch.bfloat16) * 6.4)(D)),
        }
    _B_in = _B_setup()

    return {
        "A_x": _A_in["x"],
        "A_k_cache": _A_in["k_cache"],
        "A_v_cache": _A_in["v_cache"],
        "A_wq": _A_in["wq"],
        "A_wo": _A_in["wo"],
        "B_x": _B_in["x"],
        "B_w1": _B_in["w1"],
        "B_b1": _B_in["b1"],
        "B_w2": _B_in["w2"],
        "B_b2": _B_in["b2"],
    }

def reference(A_x, A_k_cache, A_v_cache, A_wq, A_wo, B_x, B_w1, B_b1, B_w2, B_b2):
    def _A_ref(x, k_cache, v_cache, wq, wo):
        B, Sq, D = x.shape
        Hq, Dh = 32, 128
        Hkv = k_cache.shape[1]
        rep = Hq // Hkv
        q = (lambda x, *d: x.permute(*d))((x @ wq).reshape(B, Sq, Hq, Dh), 0, 2, 1, 3)
        k = (lambda x, n, axis: torch.repeat_interleave(x, n, dim=axis))(k_cache, rep, axis=1)
        v = (lambda x, n, axis: torch.repeat_interleave(x, n, dim=axis))(v_cache, rep, axis=1)
        scores = torch.einsum("bhqd,bhkd->bhqk", q, k) * (Dh ** -0.5)
        p = _softmax(scores, axis=-1)
        o = torch.einsum("bhqk,bhkd->bhqd", p, v)
        return (lambda x, *d: x.permute(*d))(o, 0, 2, 1, 3).reshape(B, Sq, Hq * Dh) @ wo

    def _B_ref(x, w1, b1, w2, b2):
        h = torch.einsum("bsd,df->bsf", x, w1) + b1
        zero = torch.zeros_like(h)
        r = torch.where(h > zero, h, zero)
        h = r * r
        out = torch.einsum("bsf,fd->bsd", h, w2) + b2
        return out

    x = A_x
    xn = _layernorm(x, axis=-1)
    return x + _A_ref(xn, A_k_cache, A_v_cache, A_wq, A_wo) + _B_ref(xn, B_w1, B_b1, B_w2, B_b2)
```

```python
NAME = "parallel_sum__gqa_block_cached__dense_activation_squared_relu__decode"
HDR = open('cdna_kernels/%s.s.ref' % NAME).read().split('; Override launch geometry')[0]

def wrap(body, grid, block, lds, vgpr=256, sgpr=102, accum=None):
    accum = accum or ((vgpr + 3) // 4 * 4)
    return HDR + f"""; @launch grid=({grid},1,1) block=({block},1,1) lds={lds}
.amdgcn_target "amdgcn-amd-amdhsa--gfx950"
.text
.globl {NAME}_kernel
.p2align 8
.type {NAME}_kernel,@function
{NAME}_kernel:
{body}
.section .rodata,"a"
.p2align 6
.amdhsa_kernel {NAME}_kernel
  .amdhsa_next_free_vgpr {vgpr}
  .amdhsa_next_free_sgpr {sgpr}
  .amdhsa_accum_offset {accum}
  .amdhsa_group_segment_fixed_size 0
  .amdhsa_kernarg_size 104
  .amdhsa_user_sgpr_count 2
  .amdhsa_user_sgpr_kernarg_segment_ptr 1
  .amdhsa_system_sgpr_workgroup_id_x 1
.end_amdhsa_kernel
"""
```

```python
import sys, struct
sys.path.insert(0, 'exp')
from genlib import *

def f32bits(x):
    return struct.unpack('<I', struct.pack('<f', x))[0]

class A:
    def __init__(s): s.l = []
    def __call__(s, t):
        for ln in t.strip('\n').split('\n'):
            s.l.append('    ' + ln.strip() if not ln.strip().endswith(':') else ln.strip())
    def text(s): return '\n'.join(s.l) + '\n'

def gen(R=8, D=2, preA=2, gmode='div', rot=1, stamps=False, TO=40000):
    F = R - 1
    SC = 0; QL = SC + 16384; QS = QL + 2048; MLL = QS + 2048
    OV = MLL + 256; RING = 24576; LDS_TOTAL = RING + 4 * R * 4096
    assert OV + 1024 <= RING and LDS_TOTAL <= 163840
    NST = 12
    QP = 0; EP = 0x20000; HP = 0x80000; OP = 0x100000; ML = 0x200000; AP = 0x300000; BP = 0x400000
    LOG2E = f32bits(1.4426950408889634); SCALE = f32bits(128 ** -0.5); EPS = f32bits(1e-5)
    a = A()
    def stamp(k):
        if stamps: a(f"s_memrealtime s[{64+2*k}:{65+2*k}]")
    a("""
s_cmp_ge_u32 s2, 256
s_cbranch_scc1 L_END
s_load_dwordx16 s[4:19], s[0:1], 0
s_load_dwordx8 s[20:27], s[0:1], 64
s_load_dwordx2 s[28:29], s[0:1], 96
v_lshrrev_b32 v1, 6, v0
v_and_b32 v0, 63, v0
v_readfirstlane_b32 s3, v1""")
    if gmode == 'div':
        a("s_lshr_b32 s30, s2, 5\ns_and_b32 s31, s2, 31")
    else:
        a("s_and_b32 s30, s2, 7\ns_lshr_b32 s31, s2, 3")
    a("""
v_lshrrev_b32 v1, 4, v0
v_and_b32 v2, 15, v0
s_cmp_ge_u32 s3, 4
s_cbranch_scc1 L_HELP""")
    a(f"""
v_lshlrev_b32 v3, 1, v1
v_xor_b32 v3, v3, v2
v_lshlrev_b32 v3, 4, v3
v_lshl_add_u32 v10, v1, 8, v3
v_xor_b32 v11, 128, v10
v_xor_b32 v12, 16, v10
v_xor_b32 v13, 144, v10
s_lshl_b32 s36, s30, 23
s_lshl_b32 s37, s31, 2
s_add_u32 s37, s37, s3
s_lshl_b32 s37, s37, 12
s_add_u32 s36, s36, s37
s_mul_i32 s37, s30, {rot << 19}
s_and_b32 s37, s37, {(8 << 20) - 1}
s_mul_i32 s38, s3, {R * 4096}
s_add_u32 s38, s38, {RING}
s_add_u32 s39, s38, {R * 4096}
s_mov_b32 s40, s38
s_mov_b32 s47, s38
s_mov_b32 s49, 0
s_mov_b32 s41, 0
s_mov_b32 s34, 0x4000000
s_mov_b32 s35, 0x20000
s_waitcnt lgkmcnt(0)
s_mov_b32 s32, s6
s_mov_b32 s33, s7""")
    def issue(mode):
        a(f"""
s_mov_b32 m0, s47
s_add_u32 s42, s36, s37
buffer_load_dwordx4 v10, s[32:35], s42 offen nt lds
buffer_load_dwordx4 v11, s[32:35], s42 offen offset:1024 nt lds
buffer_load_dwordx4 v12, s[32:35], s42 offen offset:2048 nt lds
buffer_load_dwordx4 v13, s[32:35], s42 offen offset:3072 nt lds
s_add_u32 s37, s37, {1 << 19}
s_and_b32 s37, s37, {(8 << 20) - 1}
s_add_u32 s47, s47, 4096
s_cmp_ge_u32 s47, s39
s_cselect_b32 s47, s38, s47
s_add_u32 s41, s41, 1""")
        if mode == 'k':
            a("s_cmp_eq_u32 s41, 16\ns_cselect_b32 s32, s8, s32\ns_cselect_b32 s33, s9, s33")
        elif mode == 'v':
            a("s_cmp_ge_u32 s41, 32\ns_cselect_b32 s34, 0, s34")
    def adv():
        a("""
s_add_u32 s40, s40, 4096
s_cmp_ge_u32 s40, s39
s_cselect_b32 s40, s38, s40
s_add_u32 s49, s49, 1""")
    a(f"L_FILL:\ns_waitcnt vmcnt({4 * (D - 1)})")
    issue('f')
    a(f"""
s_cmp_lg_u32 s41, {preA}
s_cbranch_scc1 L_FILL2
s_barrier
L_FILL2:
s_cmp_lt_u32 s41, {F}
s_cbranch_scc1 L_FILL
v_lshlrev_b32 v3, 1, v2
v_and_b32 v3, 15, v3
v_lshrrev_b32 v4, 3, v2
v_or_b32 v3, v3, v4                   ; f(p)
v_xor_b32 v3, v3, v1
v_lshlrev_b32 v3, 4, v3
v_lshl_add_u32 v14, v2, 8, v3
v_lshrrev_b32 v3, 2, v2
v_lshl_or_b32 v3, v1, 2, v3           ; row
v_lshlrev_b32 v4, 1, v3
v_and_b32 v4, 15, v4
v_lshrrev_b32 v5, 3, v3
v_or_b32 v4, v4, v5                   ; f(row)
v_bfe_u32 v5, v2, 1, 1
v_xor_b32 v4, v4, v5
v_lshlrev_b32 v4, 4, v4
v_lshl_add_u32 v15, v3, 8, v4
v_and_b32 v5, 1, v2
v_lshl_add_u32 v15, v5, 3, v15
v_and_b32 v6, 7, v2                   ; n = head
v_lshl_add_u32 v3, v1, 3, v6
s_lshl_b32 s43, s3, 12
v_lshlrev_b32 v3, 3, v3
v_add_u32 v16, s43, v3
v_lshlrev_b32 v3, 4, v1
v_lshl_add_u32 v17, v6, 8, v3         ; Q addr
v_mov_b32 v18, 0xff800000
s_mov_b32 s44, {SCALE}
s_mov_b32 s45, 0xffff0000
s_mov_b32 s46, {LOG2E}
v_mov_b32 v19, 0""")
    for i in range(32):
        a(f"v_mov_b32 v{96 + i}, 0")
    a("s_barrier")
    stamp(0)
    a(f"""
ds_read_b128 v[20:23], v17 offset:{QL}
ds_read_b128 v[24:27], v17 offset:{QL+64}
ds_read_b128 v[28:31], v17 offset:{QL+128}
ds_read_b128 v[32:35], v17 offset:{QL+192}
L_K:
v_add_u32 v4, s40, v14
v_xor_b32 v5, 64, v4
v_xor_b32 v7, 128, v4
v_xor_b32 v8, 192, v4
s_cmp_lt_u32 s49, {F}
s_cbranch_scc1 L_K_CU
s_waitcnt vmcnt({4 * (D - 1)})
L_K_ISSUE:""")
    issue('k')
    a(f"""
L_K_BODY:
ds_read_b128 v[40:43], v4
ds_read_b128 v[44:47], v5
ds_read_b128 v[48:51], v7
ds_read_b128 v[52:55], v8
s_waitcnt lgkmcnt(0)
v_mfma_f32_16x16x32_bf16 v[56:59], v[40:43], v[20:23], 0
v_mfma_f32_16x16x32_bf16 v[56:59], v[44:47], v[24:27], v[56:59]
v_mfma_f32_16x16x32_bf16 v[56:59], v[48:51], v[28:31], v[56:59]
v_mfma_f32_16x16x32_bf16 v[56:59], v[52:55], v[32:35], v[56:59]""")
    adv()
    a(f"""
s_nop 3
v_cvt_pk_bf16_f32 v60, v56, v57
v_cvt_pk_bf16_f32 v61, v58, v59
v_max3_f32 v18, v18, v56, v57
v_max3_f32 v18, v18, v58, v59
v_lshlrev_b32 v62, 16, v60
v_and_b32 v63, s45, v60
v_lshlrev_b32 v64, 16, v61
v_and_b32 v65, s45, v61
v_mul_f32 v62, s44, v62
v_mul_f32 v63, s44, v63
v_mul_f32 v64, s44, v64
v_mul_f32 v65, s44, v65
v_cvt_pk_bf16_f32 v60, v62, v63
v_cvt_pk_bf16_f32 v61, v64, v65
ds_write_b64 v16, v[60:61] offset:{SC}
v_add_u32 v16, 256, v16
s_cmp_lt_u32 s49, 16
s_cbranch_scc1 L_K""")
    stamp(1)
    a(f"""
v_mov_b32 v3, v18
v_subrev_u32 v16, 4096, v16
s_nop 0
v_permlane16_swap_b32 v18, v3
v_max_f32 v18, v18, v3
v_mov_b32 v3, v18
s_nop 1
v_permlane32_swap_b32 v18, v3
v_max_f32 v18, v18, v3
v_cvt_pk_bf16_f32 v18, v18, v18
v_and_b32 v18, s45, v18
v_mul_f32 v18, s44, v18
v_cvt_pk_bf16_f32 v18, v18, v18
v_and_b32 v18, s45, v18
L_V:
v_add_u32 v40, s40, v15
v_xor_b32 v41, 32, v40
v_xor_b32 v42, 64, v40
v_xor_b32 v43, 96, v40
v_xor_b32 v44, 128, v40
v_xor_b32 v45, 160, v40
v_xor_b32 v46, 192, v40
v_xor_b32 v47, 224, v40
ds_read_b64 v[60:61], v16 offset:{SC}
v_add_u32 v16, 256, v16
s_waitcnt lgkmcnt(0)
v_lshlrev_b32 v62, 16, v60
v_and_b32 v63, s45, v60
v_lshlrev_b32 v64, 16, v61
v_and_b32 v65, s45, v61
v_sub_f32 v62, v62, v18
v_sub_f32 v63, v63, v18
v_sub_f32 v64, v64, v18
v_sub_f32 v65, v65, v18
v_mul_f32 v62, s46, v62
v_mul_f32 v63, s46, v63
v_mul_f32 v64, s46, v64
v_mul_f32 v65, s46, v65
v_exp_f32 v62, v62
v_exp_f32 v63, v63
v_exp_f32 v64, v64
v_exp_f32 v65, v65
s_waitcnt vmcnt({4 * (D - 1)})""")
    for d in range(8):
        a(f"ds_read_b64_tr_b16 v[{70 + 2 * d}:{71 + 2 * d}], v{40 + d}")
    issue('v')
    a(f"""
v_cvt_pk_bf16_f32 v66, v62, v63
v_cvt_pk_bf16_f32 v67, v64, v65
v_add_f32 v62, v62, v63
v_add_f32 v64, v64, v65
v_add_f32 v19, v19, v62
v_add_f32 v19, v19, v64
s_waitcnt lgkmcnt(0)""")
    for d in range(8):
        a(f"v_mfma_f32_16x16x16_bf16 v[{96 + 4 * d}:{99 + 4 * d}], v[{70 + 2 * d}:{71 + 2 * d}], v[66:67], v[{96 + 4 * d}:{99 + 4 * d}]")
    adv()
    a(f"""
s_cmp_lt_u32 s49, 32
s_cbranch_scc1 L_V
v_mov_b32 v3, v19
v_xor_b32 v4, v1, v6
v_lshlrev_b32 v4, 4, v4
v_permlane16_swap_b32 v19, v3
v_add_f32 v19, v19, v3
v_mov_b32 v3, v19
v_lshl_add_u32 v4, v6, 9, v4
v_add_u32 v40, s43, v4
v_permlane32_swap_b32 v19, v3
v_add_f32 v19, v19, v3
s_lshl_b32 s47, s3, 6
v_lshlrev_b32 v5, 3, v6
v_add_u32 v5, s47, v5""")
    for d in range(1, 8):
        a(f"v_xor_b32 v{40 + d}, {64 * d}, v40")
    for d in range(8):
        a(f"ds_write_b128 v{40 + d}, v[{96 + 4 * d}:{99 + 4 * d}] offset:{SC}")
    a(f"""
ds_write_b64 v5, v[18:19] offset:{MLL}
s_waitcnt lgkmcnt(0)""")
    stamp(2)
    a("s_barrier")
    if stamps:
        a(f"""
s_cmp_lg_u32 s3, 0
s_cbranch_scc1 L_END
s_mov_b64 exec, 1
s_mul_i32 s38, s2, {NST*8}
s_add_u32 s38, s38, {(128 << 20) + 72}
v_mov_b32 v1, s38
s_waitcnt lgkmcnt(0)""")
        for k in range(3):
            a(f"v_mov_b32 v2, s{64+2*k}\nv_mov_b32 v3, s{65+2*k}\nglobal_store_dwordx2 v1, v[2:3], s[28:29] offset:{8*k}\ns_nop 1")
    a(f"""
s_waitcnt vmcnt(0)
s_endpgm
L_K_CU:
s_waitcnt vmcnt({4 * D})
s_cmp_lt_u32 s49, {D}
s_cbranch_scc1 L_K_ISSUE
s_branch L_K_BODY""")

    W = 64; U = 96; X = 16; ACC = 32; Z = 48; SA = 160; SB = 168; XF = 176; G = 176; W1 = 192
    VT = 61
    def tile(wreg, vaddr, sbase, stride_s):
        for t in range(8):
            a(f"global_load_dwordx4 v[{wreg+4*t}:{wreg+4*t+3}], v{vaddr}, s[{sbase}:{sbase+1}] nt")
            if t < 7: a(f"v_add_u32 v{vaddr}, {stride_s}, v{vaddr}")
    def tile2k(wreg, vaddr, sbase):
        for t in range(8):
            a(f"global_load_dwordx4 v[{wreg+4*t}:{wreg+4*t+3}], v{vaddr}, s[{sbase}:{sbase+1}] offset:{(t & 3) * 2048 - 4096} nt")
            if t == 3: a(f"v_add_u32 v{vaddr}, 0x2000, v{vaddr}")
    def check(regs, acc, sx):
        for r in regs: a(f"v_xor_b32 v{r}, s{sx}, v{r}")
    def orred(regs, acc):
        a(f"v_or3_b32 v{acc}, v{regs[0]}, v{regs[1]}, v{regs[2]}")
        rest = regs[3:]
        while len(rest) >= 2:
            a(f"v_or3_b32 v{acc}, v{acc}, v{rest[0]}, v{rest[1]}"); rest = rest[2:]
        if rest: a(f"v_or_b32 v{acc}, v{acc}, v{rest[0]}")
    a(f"""
L_HELP:
s_setprio 3
s_sub_u32 s3, s3, 4                   ; hw
s_and_b32 s32, s2, 63                 ; cg
s_lshr_b32 s33, s2, 6                 ; rs
v_lshrrev_b32 v3, 3, v0               ; l>>3
v_and_b32 v4, 7, v0                   ; l&7
s_lshl_b32 s36, s3, 6
v_lshl_add_u32 v5, v3, 3, s36         ; hw*64 + (l>>3)*8
s_lshl_b32 s37, s33, 8
v_add_u32 v6, s37, v5                 ; rowA
v_lshlrev_b32 v8, 5, v0
v_lshlrev_b32 v9, 1, v6
v_lshlrev_b32 v11, 13, v6
v_lshl_add_u32 v11, v4, 4, v11
s_lshl_b32 s37, s32, 7
v_add_u32 v11, s37, v11
s_mov_b32 s42, 8192
s_cmp_ge_u32 s2, 224
s_cselect_b32 s34, 224, 0
s_sub_u32 s34, s2, s34                ; j1 = j mod 224
s_lshr_b32 s43, s34, 1
s_mul_i32 s35, s34, 1171
s_lshr_b32 s35, s35, 16               ; rs1 = j1/56
s_mul_i32 s36, s35, 56
s_sub_u32 s34, s34, s36               ; cg1
s_lshl_b32 s37, s35, 8
v_add_u32 v7, s37, v5                 ; rowB
s_waitcnt lgkmcnt(0)""")
    stamp(0)
    a(f"""
s_load_dword s59, s[28:29], {EP}
global_load_dwordx4 v[{XF}:{XF+3}], v8, s[4:5]
global_load_dwordx4 v[{XF+4}:{XF+7}], v8, s[4:5] offset:16
global_load_dwordx4 v[{XF+8}:{XF+11}], v8, s[4:5] offset:2048
global_load_dwordx4 v[{XF+12}:{XF+15}], v8, s[4:5] offset:2064
global_load_dwordx4 v[{SA}:{SA+3}], v9, s[4:5]
global_load_dwordx4 v[{SA+4}:{SA+7}], v9, s[4:5] offset:2048""")
    tile(W, 11, 10, 's42')
    a(f"""
v_lshlrev_b32 v10, 1, v7
v_mul_u32_u24 v11, 7168, v7
v_lshl_add_u32 v11, v4, 4, v11
s_lshl_b32 s37, s34, 7
v_add_u32 v11, s37, v11
s_mov_b32 s42, 7168
global_load_dwordx4 v[{SB}:{SB+3}], v10, s[4:5]
global_load_dwordx4 v[{SB+4}:{SB+7}], v10, s[4:5] offset:2048""")
    tile(W1, 11, 16, 's42')
    a(f"""
s_mov_b32 s45, 0xffff0000
s_mov_b32 s46, {LOG2E}
s_mov_b32 s57, 0xffffff00
s_mov_b32 s48, 0                      ; pass
v_and_b32 v57, 1, v0
v_lshl_add_u32 v57, v57, 2, v1
s_and_b32 s38, s2, 127
s_lshl_b32 s38, s38, 3
v_add_u32 v57, s38, v57
v_lshlrev_b32 v57, 1, v57
v_bfe_u32 v58, v0, 1, 1
v_lshl_add_u32 v8, v58, 11, v57
global_load_ushort v7, v57, s[22:23]
global_load_ushort v6, v8, s[4:5]
; b1: f = rb'*32 + (l&7)*4 + (l>>4)
s_lshl_b32 s38, s43, 5
v_lshl_add_u32 v57, v4, 2, v1
v_add_u32 v58, s38, v57
v_lshlrev_b32 v58, 1, v58
global_load_ushort v5, v58, s[18:19]
v_and_b32 v58, 1, v3
v_lshlrev_b32 v58, 2, v58
v_lshl_add_u32 v57, v57, 3, v58
s_lshl_b32 s38, s3, 8
v_add_u32 v62, s38, v57
s_lshr_b32 s36, s30, 2                ; b
s_and_b32 s37, s30, 3                 ; kvh
s_lshl_b32 s38, s30, 17
s_lshl_b32 s39, s3, 15
s_add_u32 s38, s38, s39
s_lshl_b32 s39, s31, 7
s_add_u32 s38, s38, s39
s_add_u32 s38, s38, {OP}
v_lshlrev_b32 v12, 12, v3
v_lshl_add_u32 v12, v4, 4, v12
v_add_u32 v12, s38, v12
s_lshl_b32 s38, s30, 11
s_lshl_b32 s39, s3, 9
s_add_u32 s38, s38, s39
s_and_b32 s39, s31, 7
s_lshl_b32 s39, s39, 5
s_add_u32 s38, s38, s39
s_lshr_b32 s39, s31, 3
s_lshl_b32 s39, s39, 3
s_add_u32 s38, s38, s39
s_add_u32 s38, s38, {ML}
v_lshrrev_b32 v58, 5, v0              ; l>>5
v_lshl_add_u32 v56, v58, 8, s38
s_and_b32 s38, s2, 1
s_lshl_b32 s38, s38, 19
s_lshl_b32 s39, s3, 17
s_add_u32 s38, s38, s39
s_lshr_b32 s39, s2, 1
s_lshl_b32 s39, s39, 6
s_add_u32 s38, s38, s39
s_add_u32 s38, s38, {BP}
v_lshlrev_b32 v14, 13, v2
v_lshl_add_u32 v14, v1, 4, v14
v_add_u32 v14, s38, v14
s_lshl_b32 s38, s34, 13
s_lshl_b32 s39, s35, 10
s_add_u32 s38, s38, s39
s_lshl_b32 s39, s3, 8
s_add_u32 s38, s38, s39
s_add_u32 s38, s38, {HP}
v_lshrrev_b32 v15, 2, v4
v_lshlrev_b32 v15, 12, v15
v_lshl_add_u32 v15, v58, 7, v15
v_and_b32 v57, 3, v0
v_lshl_add_u32 v15, v57, 5, v15
v_and_b32 v57, 16, v0
v_add3_u32 v15, v15, v57, s38
v_lshlrev_b32 v13, 8, v58
v_lshl_add_u32 v13, v4, 5, v13
s_lshl_b32 s38, s3, 9
v_add3_u32 v13, v13, v57, s38
s_and_b32 s39, s2, 1
s_lshl_b32 s39, s39, 10
s_lshl_b32 s38, s3, 8
s_add_u32 s38, s38, s39
s_add_u32 s38, s38, 4096
v_lshlrev_b32 v9, 14, v1
v_lshl_add_u32 v9, v2, 4, v9
v_add_u32 v9, s38, v9
s_waitcnt vmcnt(21) lgkmcnt(0)
s_add_u32 s59, s59, 1
s_and_b32 s56, s59, 0xff
s_and_b32 s58, s59, 0xffff
v_mov_b32 v{VT}, s56""")
    for i in range(16):
        a(f"v_lshlrev_b32 v{U+2*i}, 16, v{XF+i}\nv_and_b32 v{U+2*i+1}, s45, v{XF+i}")
    def red2(r0, r1, t):
        a(f"""
s_nop 1
v_permlane32_swap_b32 v{r0}, v{r1}
v_add_f32 v{r0}, v{r0}, v{r1}
v_mov_b32 v{t}, v{r0}
s_nop 1
v_permlane16_swap_b32 v{r0}, v{t}
v_add_f32 v{r0}, v{r0}, v{t}""")
        for n in (8, 4, 2, 1):
            a(f"s_nop 1\nv_add_f32_dpp v{r0}, v{r0}, v{r0} row_ror:{n} row_mask:0xf bank_mask:0xf")
    for i in range(1, 8):
        for b in range(2):
            base = U + 16 * b
            if i == 1: a(f"v_pk_add_f32 v[{48+2*b}:{49+2*b}], v[{base}:{base+1}], v[{base+2}:{base+3}]")
            else: a(f"v_pk_add_f32 v[{48+2*b}:{49+2*b}], v[{48+2*b}:{49+2*b}], v[{base+2*i}:{base+2*i+1}]")
    for b in range(2):
        a(f"v_add_f32 v{48+2*b}, v{48+2*b}, v{49+2*b}")
    red2(48, 50, 49)
    a(f"""
v_mul_f32 v48, {f32bits(1/1024)}, v48
s_nop 0
v_readlane_b32 s50, v48, 0
v_readlane_b32 s52, v48, 32
s_mov_b32 s51, s50
s_mov_b32 s53, s52""")
    for i in range(8):
        for b in range(2):
            base = U + 16 * b
            a(f"v_pk_add_f32 v[{base+2*i}:{base+2*i+1}], v[{base+2*i}:{base+2*i+1}], s[{50+2*b}:{51+2*b}] neg_lo:[0,1] neg_hi:[0,1]")
    for i in range(8):
        for b in range(2):
            base = U + 16 * b
            if i == 0: a(f"v_pk_mul_f32 v[{50+2*b}:{51+2*b}], v[{base}:{base+1}], v[{base}:{base+1}]")
            else: a(f"v_pk_fma_f32 v[{50+2*b}:{51+2*b}], v[{base+2*i}:{base+2*i+1}], v[{base+2*i}:{base+2*i+1}], v[{50+2*b}:{51+2*b}]")
    for b in range(2):
        a(f"v_add_f32 v{50+2*b}, v{50+2*b}, v{51+2*b}")
    red2(50, 52, 51)
    a(f"""
v_mul_f32 v50, {f32bits(1/1024)}, v50
v_cvt_pk_bf16_f32 v50, v50, v48
v_and_b32 v48, s45, v50
v_lshlrev_b32 v50, 16, v50
v_add_f32 v50, {EPS}, v50
v_cvt_pk_bf16_f32 v50, v50, v50
v_and_b32 v50, s45, v50
v_sqrt_f32 v51, v50
s_nop 0
v_cvt_pk_bf16_f32 v51, v51, v51
v_and_b32 v51, s45, v51               ; s
v_rcp_f32 v52, v51
v_readlane_b32 s50, v48, 0
v_readlane_b32 s51, v48, 32
v_readlane_b32 s52, v51, 0
v_readlane_b32 s53, v51, 32
v_readlane_b32 s54, v52, 0
v_readlane_b32 s55, v52, 32
s_nop 0
L_NORM:""")
    for t in range(8):
        r0 = SA + t // 2; r1 = SA + 4 + t // 2
        x = X + 2 * t
        if t % 2 == 0:
            a(f"v_lshlrev_b32 v{x}, 16, v{r0}\nv_lshlrev_b32 v{x+1}, 16, v{r1}")
        else:
            a(f"v_and_b32 v{x}, s45, v{r0}\nv_and_b32 v{x+1}, s45, v{r1}")
        a(f"""
v_pk_add_f32 v[{x}:{x+1}], v[{x}:{x+1}], s[50:51] neg_lo:[0,1] neg_hi:[0,1]
v_cvt_pk_bf16_f32 v48, v{x}, v{x+1}
v_lshlrev_b32 v{x}, 16, v48
v_and_b32 v{x+1}, s45, v48
v_pk_mul_f32 v[50:51], v[{x}:{x+1}], s[54:55]
v_pk_fma_f32 v[52:53], v[50:51], s[52:53], v[{x}:{x+1}] neg_lo:[1,0,0] neg_hi:[1,0,0]
v_pk_fma_f32 v[50:51], v[52:53], s[54:55], v[50:51]
v_cvt_pk_bf16_f32 v48, v50, v51
v_lshlrev_b32 v{x}, 16, v48
v_and_b32 v{x+1}, s45, v48""")
    a("""
s_cmp_eq_u32 s48, 1
s_cbranch_scc1 L_UN1W
s_waitcnt vmcnt(11)""")
    stamp(1)
    a("L_UN0:")
    for i in range(32):
        a(f"v_lshlrev_b32 v{U+2*i}, 16, v{W+i}\nv_and_b32 v{U+2*i+1}, s45, v{W+i}")
    a("""
s_branch L_FMA
L_UN1W:
s_waitcnt vmcnt(12)
L_UN1:""")
    for i in range(32):
        a(f"v_lshlrev_b32 v{U+2*i}, 16, v{W1+i}\nv_and_b32 v{U+2*i+1}, s45, v{W1+i}")
    a("""
s_cmp_eq_u32 s48, 3
s_cbranch_scc1 L_TAIL
L_FMA:""")
    for t in range(8):
        for c in range(8):
            u = U + 8 * t + (c & ~1)
            sel = "op_sel:[1,0,0] op_sel_hi:[1,1,1]" if c & 1 else "op_sel:[0,0,0] op_sel_hi:[0,1,1]"
            if t == 0:
                sel2 = "op_sel:[1,0] op_sel_hi:[1,1]" if c & 1 else "op_sel:[0,0] op_sel_hi:[0,1]"
                a(f"v_pk_mul_f32 v[{ACC+2*c}:{ACC+2*c+1}], v[{u}:{u+1}], v[{X}:{X+1}] {sel2}")
            else:
                a(f"v_pk_fma_f32 v[{ACC+2*c}:{ACC+2*c+1}], v[{u}:{u+1}], v[{X+2*t}:{X+2*t+1}], v[{ACC+2*c}:{ACC+2*c+1}] {sel}")
    for c in range(8):
        a(f"v_permlane32_swap_b32 v{ACC+2*c}, v{ACC+2*c+1}")
    for c in range(8):
        a(f"v_add_f32 v{Z+c}, v{ACC+2*c}, v{ACC+2*c+1}")
    for i in range(4):
        a(f"v_permlane16_swap_b32 v{Z+i}, v{Z+4+i}")
    for i in range(4):
        a(f"v_add_f32 v{Z+i}, v{Z+i}, v{Z+4+i}")
    a("""
s_cmp_ge_u32 s48, 2
s_cbranch_scc1 L_PUB2""")
    for i in range(4):
        a(f"v_add_f32_dpp v{Z+i}, v{Z+i}, v{Z+i} row_ror:8 row_mask:0xf bank_mask:0xf")
    a(f"""
s_cmp_eq_u32 s48, 1
s_cbranch_scc1 L_POST1
ds_write_b128 v13, v[{Z}:{Z+3}] offset:{QS}
s_mov_b32 s48, 1
s_lshl_b32 s38, s36, 14
s_lshl_b32 s39, s37, 12
s_add_u32 s38, s38, s39
s_lshl_b32 s39, s3, 10
s_add_u32 s38, s38, s39
v_lshl_add_u32 v10, v0, 4, s38
v_add_u32 v13, 0x10000, v10
s_lshl_b32 s38, s43, 16
v_add_u32 v11, s38, v9""")
    for i in range(8):
        a(f"v_mov_b32 v{SA+i}, v{SB+i}")
    a(f"""
s_waitcnt lgkmcnt(0)
s_barrier""")
    stamp(2)
    a(f"""
s_cmp_lg_u32 s3, 0
s_cbranch_scc1 L_QP_DONE
v_and_b32 v57, 31, v0
v_lshlrev_b32 v57, 4, v57
ds_read_b128 v[32:35], v57 offset:{QS}
ds_read_b128 v[36:39], v57 offset:{QS+512}
ds_read_b128 v[40:43], v57 offset:{QS+1024}
ds_read_b128 v[44:47], v57 offset:{QS+1536}
s_lshl_b32 s38, s33, 15
s_lshl_b32 s39, s32, 8
s_add_u32 s38, s38, s39
v_and_b32 v58, 1, v1
v_lshlrev_b32 v58, 14, v58
v_lshl_add_u32 v58, v2, 4, v58
v_add_u32 v58, s38, v58
s_waitcnt lgkmcnt(0)
v_pk_add_f32 v[32:33], v[32:33], v[36:37]
v_pk_add_f32 v[34:35], v[34:35], v[38:39]
v_pk_add_f32 v[40:41], v[40:41], v[44:45]
v_pk_add_f32 v[42:43], v[42:43], v[46:47]
v_pk_add_f32 v[32:33], v[32:33], v[40:41]
v_pk_add_f32 v[34:35], v[34:35], v[42:43]""")
    for i in range(4):
        a(f"v_and_or_b32 v{32+i}, v{32+i}, s57, v{VT}")
    a(f"""
s_mov_b32 exec_hi, 0
global_store_dwordx4 v58, v[32:35], s[28:29] sc1
s_mov_b32 exec_hi, -1
L_QP_DONE:""")
    def qgather():
        a(f"""
global_load_dwordx4 v[{G}:{G+3}], v10, s[28:29] sc1
global_load_dwordx4 v[{G+8}:{G+11}], v13, s[28:29] sc1
v_add_u32 v57, 0x8000, v10
v_add_u32 v58, 0x8000, v13
global_load_dwordx4 v[{G+4}:{G+7}], v57, s[28:29] sc1
global_load_dwordx4 v[{G+12}:{G+15}], v58, s[28:29] sc1""")
    qgather()
    tile2k(W, 11, 20)
    a("s_branch L_NORM\nL_POST1:")
    for i in range(4):
        a(f"v_and_or_b32 v{Z+i}, v{Z+i}, s57, v{VT}")
    a(f"""
s_mov_b32 exec_lo, 0x00ff00ff
s_mov_b32 exec_hi, 0x00ff00ff
global_store_dwordx4 v15, v[{Z}:{Z+3}], s[28:29] sc1
s_mov_b64 exec, -1
s_lshr_b32 s38, s2, 1
s_lshl_b32 s38, s38, 16
v_add_u32 v11, s38, v9""")
    tile2k(W1, 11, 12)
    stamp(3)
    a(f"""
s_mov_b32 s49, {TO}
s_waitcnt vmcnt(17)
L_POLLQ:""")
    check(range(G, G + 16), 60, 56)
    orred(list(range(G, G + 16)), 60)
    a(f"""
v_and_b32 v60, 0xff, v60
v_cmp_ne_u32 vcc, 0, v60
s_cbranch_vccz L_POLLQ_OK
s_sub_u32 s49, s49, 1
s_cbranch_scc1 L_POLLQ_OK
s_sleep 2""")
    qgather()
    a(f"""
s_waitcnt vmcnt(0)
s_branch L_POLLQ
L_POLLQ_OK:""")
    for h in range(2):
        a(f"v_pk_add_f32 v[{G+2*h}:{G+2*h+1}], v[{G+2*h}:{G+2*h+1}], v[{G+4+2*h}:{G+5+2*h}]")
        a(f"v_pk_add_f32 v[{G+8+2*h}:{G+9+2*h}], v[{G+8+2*h}:{G+9+2*h}], v[{G+12+2*h}:{G+13+2*h}]")
        a(f"v_pk_add_f32 v[{G+2*h}:{G+2*h+1}], v[{G+2*h}:{G+2*h+1}], v[{G+8+2*h}:{G+9+2*h}]")
        a(f"v_cvt_pk_bf16_f32 v{32+h}, v{G+2*h}, v{G+2*h+1}")
    a(f"""
s_lshl_b32 s38, s3, 9
v_lshl_add_u32 v58, v0, 3, s38
ds_write_b64 v58, v[32:33] offset:{QL}
s_waitcnt lgkmcnt(0)""")
    stamp(4)
    a(f"""
s_barrier
s_mov_b32 s48, 2
s_lshl_b32 s38, s43, 12
s_add_u32 s38, s38, {HP}
v_lshl_add_u32 v57, v0, 4, s38
s_lshl_b32 s38, s3, 8
v_lshl_add_u32 v10, v1, 6, s38
s_cmp_ge_u32 s2, 224
s_cselect_b32 s57, 0, s57
s_mov_b32 s49, {TO}
L_POLLH:""")
    for i in range(4):
        a(f"global_load_dwordx4 v[{32+4*i}:{35+4*i}], v57, s[28:29] offset:{1024*i} sc1")
    a("s_waitcnt vmcnt(0)")
    check(range(32, 48), 60, 56)
    orred(list(range(32, 48)), 60)
    a(f"""
v_and_b32 v60, 0xff, v60
v_cmp_ne_u32 vcc, 0, v60
s_cbranch_vccz L_POLLH_OK
s_sub_u32 s49, s49, 1
s_cbranch_scc1 L_POLLH_OK
s_sleep 8
s_branch L_POLLH
L_POLLH_OK:
v_pk_add_f32 v[32:33], v[32:33], v[36:37]
v_pk_add_f32 v[34:35], v[34:35], v[38:39]
v_pk_add_f32 v[40:41], v[40:41], v[44:45]
v_pk_add_f32 v[42:43], v[42:43], v[46:47]
v_pk_add_f32 v[32:33], v[32:33], v[40:41]
v_pk_add_f32 v[34:35], v[34:35], v[42:43]
s_nop 1
v_permlane32_swap_b32 v32, v34
v_permlane32_swap_b32 v33, v35
v_add_f32 v32, v32, v34
v_add_f32 v33, v33, v35
s_nop 1
v_permlane16_swap_b32 v32, v33
v_add_f32 v32, v32, v33
v_cvt_pk_bf16_f32 v32, v32, v32
v_and_b32 v32, s45, v32
v_lshlrev_b32 v5, 16, v5
v_add_f32 v32, v32, v5
v_cvt_pk_bf16_f32 v32, v32, v32
v_and_b32 v32, s45, v32
v_cmp_gt_f32 vcc, v32, 0
s_nop 1
v_cndmask_b32 v32, 0, v32, vcc
v_mul_f32 v32, v32, v32
v_cvt_pk_bf16_f32 v32, v32, v32
v_and_b32 v32, s45, v32
ds_write_b32 v62, v32 offset:{OV}
s_waitcnt lgkmcnt(0)""")
    for i in range(4):
        a(f"ds_read_b128 v[{X+4*i}:{X+4*i+3}], v10 offset:{OV+16*i}")
    a(f"""
s_waitcnt lgkmcnt(0)
s_branch L_UN0
L_PUB2:""")
    for i in range(4):
        a(f"v_and_or_b32 v{Z+i}, v{Z+i}, s57, v{VT}")
    a(f"""
global_store_dwordx4 v14, v[{Z}:{Z+3}], s[28:29] sc1
s_cmp_lg_u32 s3, 0
s_cbranch_scc1 L_HOP2_DONE
s_cmp_ge_u32 s2, 128
s_cbranch_scc1 L_HOP2_DONE
s_cmp_eq_u32 s48, 2
s_cselect_b32 s38, {BP - AP}, 0
s_cselect_b32 s40, 16, 0
s_lshl_b32 s39, s2, 13
s_add_u32 s38, s38, s39
s_add_u32 s38, s38, {AP + 4096}
v_lshl_add_u32 v57, v0, 4, s38
s_mov_b32 s49, {TO}
L_POLL2:""")
    for i in range(8):
        a(f"global_load_dwordx4 v[{W+4*i}:{W+4*i+3}], v57, s[28:29] offset:{1024*i-4096} sc1")
    a(f"s_waitcnt vmcnt(4)")
    check(range(W, W + 16), 60, 56)
    a(f"s_waitcnt vmcnt(0)")
    check(range(W + 16, W + 32), 60, 56)
    orred(list(range(W, W + 32)), 60)
    a(f"""
v_and_b32 v60, 0xff, v60
v_cmp_ne_u32 vcc, 0, v60
s_cbranch_vccz L_POLL2_OK
s_cmp_eq_u32 s40, 0
s_cbranch_scc1 L_POLL2_NS
s_sleep 16
L_POLL2_NS:
s_sub_u32 s49, s49, 1
s_cbranch_scc0 L_POLL2
L_POLL2_OK:""")
    for s in (16, 8, 4):
        for i in range(0, s, 2):
            a(f"v_pk_add_f32 v[{W+i}:{W+i+1}], v[{W+i}:{W+i+1}], v[{W+s+i}:{W+s+i+1}]")
    a(f"""
s_nop 1
v_permlane32_swap_b32 v{W}, v{W+2}
v_permlane32_swap_b32 v{W+1}, v{W+3}
v_add_f32 v{W}, v{W}, v{W+2}
v_add_f32 v{W+1}, v{W+1}, v{W+3}
s_nop 1
v_permlane16_swap_b32 v{W}, v{W+1}
v_add_f32 v{W}, v{W}, v{W+1}
s_nop 1
v_add_f32_dpp v{W}, v{W}, v{W} row_ror:8 row_mask:0xf bank_mask:0xf
s_nop 1
v_add_f32_dpp v{W}, v{W}, v{W} row_ror:4 row_mask:0xf bank_mask:0xf
v_cvt_pk_bf16_f32 v{W}, v{W}, v{W}
v_and_b32 v{W}, s45, v{W}
v_lshlrev_b32 v7, 16, v7
v_add_f32 v{W}, v{W}, v7
v_cvt_pk_bf16_f32 v{W}, v{W}, v{W}
v_and_b32 v{W}, s45, v{W}
s_cmp_eq_u32 s48, 3
s_cbranch_scc1 L_FINAL
v_mov_b32 v5, v{W}                    ; B
v_mov_b32 v7, v6
L_HOP2_DONE:
s_cmp_eq_u32 s48, 3
s_cbranch_scc1 {'L_STAMP' if stamps else 'L_END'}""")
    stamp(5)
    a(f"""
v_add_u32 v14, {(AP - BP) & 0xffffffff}, v14
s_mov_b32 s57, 0xffffff00
s_mov_b32 s48, 3
s_branch L_UN1
L_TAIL:
v_lshrrev_b32 v57, 5, v0
s_lshl_b32 s38, s3, 1
v_add_u32 v57, s38, v57               ; head
v_and_b32 v58, 31, v0
v_xor_b32 v58, v58, v57
v_lshlrev_b32 v58, 4, v58
v_lshl_add_u32 v58, v57, 9, v58
v_lshlrev_b32 v57, 3, v57
s_lshr_b32 s38, s2, 1
s_lshl_b32 s39, s38, 12
s_add_u32 s39, s39, {OP}
v_lshl_add_u32 v59, v0, 4, s39
v_add_u32 v13, 0x80000, v59
s_lshr_b32 s38, s38, 2
s_lshl_b32 s38, s38, 8
s_add_u32 s38, s38, {ML}
v_lshl_add_u32 v62, v3, 5, s38
v_add_u32 v15, 8192, v62
v_lshlrev_b32 v10, 6, v1
v_lshlrev_b32 v63, 5, v4
v_and_b32 v60, 16, v0
v_add_u32 v63, v63, v60
v_lshrrev_b32 v60, 5, v0
v_lshl_add_u32 v63, v60, 2, v63
v_add_u32 v63, {OV}, v63
s_barrier""")
    stamp(6)
    for w in range(4):
        a(f"ds_read_b64 v[{16+2*w}:{17+2*w}], v57 offset:{MLL+64*w}")
    for w in range(4):
        a(f"ds_read_b128 v[{32+4*w}:{35+4*w}], v58 offset:{SC+4096*w}")
    a(f"""
s_waitcnt lgkmcnt(4)
v_max3_f32 v24, v16, v18, v20
v_max_f32 v24, v24, v22""")
    for w in range(4):
        a(f"v_sub_f32 v{16+2*w}, v{16+2*w}, v24")
    for w in range(4):
        a(f"v_mul_f32 v{16+2*w}, s46, v{16+2*w}")
    for w in range(4):
        a(f"v_exp_f32 v{16+2*w}, v{16+2*w}")
    a(f"""
s_waitcnt lgkmcnt(0)
v_pk_mul_f32 v[32:33], v[32:33], v[16:17] op_sel_hi:[1,0]
v_pk_mul_f32 v[34:35], v[34:35], v[16:17] op_sel_hi:[1,0]""")
    for w in range(1, 4):
        for h in range(2):
            a(f"v_pk_fma_f32 v[{32+2*h}:{33+2*h}], v[{32+4*w+2*h}:{33+4*w+2*h}], v[{16+2*w}:{17+2*w}], v[{32+2*h}:{33+2*h}] op_sel_hi:[1,0,1]")
    for i in range(4):
        a(f"v_and_or_b32 v{32+i}, v{32+i}, s57, v{VT}")
    a(f"""
global_store_dwordx4 v12, v[32:35], s[28:29] sc1
v_mul_f32 v25, v16, v17
v_fma_f32 v25, v18, v19, v25
v_fma_f32 v25, v20, v21, v25
v_fma_f32 v25, v22, v23, v25
v_or_b32 v24, s58, v24
v_and_or_b32 v25, v25, s57, v{VT}
s_mov_b32 exec_lo, 1
s_mov_b32 exec_hi, 1
global_store_dwordx2 v56, v[24:25], s[28:29] sc1
s_mov_b64 exec, -1
s_cmp_lg_u32 s3, 0
s_cbranch_scc1 L_HOP1_DONE
s_mov_b32 s49, {TO}
L_POLL1:""")
    a(f"global_load_dwordx4 v[16:19], v62, s[28:29] sc1")
    a(f"global_load_dwordx4 v[20:23], v62, s[28:29] offset:16 sc1")
    a(f"global_load_dwordx4 v[24:27], v15, s[28:29] sc1")
    a(f"global_load_dwordx4 v[28:31], v15, s[28:29] offset:16 sc1")
    for b in range(2):
        for i in range(4):
            a(f"global_load_dwordx4 v[{W+16*b+4*i}:{W+16*b+4*i+3}], v{(59, 13)[b]}, s[28:29] offset:{1024*i} sc1")
    a(f"s_waitcnt vmcnt(8)")
    check(range(16, 32, 2), 0, 58)
    check(range(17, 32, 2), 0, 56)
    orred(list(range(16, 32, 2)), 60)
    a("v_and_b32 v60, 0xffff, v60")
    orred(list(range(17, 32, 2)), 40)
    a(f"s_waitcnt vmcnt(4)")
    check(range(W, W + 16), 0, 56)
    a(f"s_waitcnt vmcnt(0)")
    check(range(W + 16, W + 32), 0, 56)
    orred([40] + list(range(W, W + 32)), 40)
    a(f"""
v_and_b32 v40, 0xff, v40
v_or_b32 v40, v40, v60
v_cmp_ne_u32 vcc, 0, v40
s_cbranch_vccz L_POLL1_OK
s_sub_u32 s49, s49, 1
s_cbranch_scc0 L_POLL1
L_POLL1_OK:
v_max3_f32 v32, v16, v18, v20
v_max3_f32 v33, v24, v26, v28
v_max_f32 v32, v32, v22
v_max_f32 v33, v33, v30
s_nop 1
v_permlane32_swap_b32 v32, v33
v_max_f32 v32, v32, v33
v_mov_b32 v33, v32
s_nop 1
v_permlane16_swap_b32 v32, v33
v_max_f32 v32, v32, v33
s_nop 1
v_max_f32_dpp v32, v32, v32 row_ror:8 row_mask:0xf bank_mask:0xf
s_nop 0
v_readlane_b32 s38, v32, 0
v_readlane_b32 s39, v32, 32
s_nop 0""")
    for k in range(8):
        a(f"v_subrev_f32 v{16+2*k}, s{38+k//4}, v{16+2*k}")
    for k in range(8):
        a(f"v_mul_f32 v{16+2*k}, s46, v{16+2*k}")
    for k in range(8):
        a(f"v_exp_f32 v{16+2*k}, v{16+2*k}")
    for b in range(2):
        o = W + 16 * b; m = 16 + 8 * b
        a(f"v_mul_f32 v{40+b}, v{m}, v{m+1}")
        for h in range(2):
            a(f"v_pk_mul_f32 v[{32+4*b+2*h}:{33+4*b+2*h}], v[{o+2*h}:{o+2*h+1}], v[{m}:{m+1}] op_sel_hi:[1,0]")
        for i in range(1, 4):
            a(f"v_fma_f32 v{40+b}, v{m+2*i}, v{m+2*i+1}, v{40+b}")
            for h in range(2):
                a(f"v_pk_fma_f32 v[{32+4*b+2*h}:{33+4*b+2*h}], v[{o+4*i+2*h}:{o+4*i+2*h+1}], v[{m+2*i}:{m+2*i+1}], v[{32+4*b+2*h}:{33+4*b+2*h}] op_sel_hi:[1,0,1]")
    a("s_nop 0\nv_permlane32_swap_b32 v40, v41")
    for k in range(4):
        a(f"v_permlane32_swap_b32 v{32+k}, v{36+k}")
    a("v_add_f32 v40, v40, v41")
    for k in range(4):
        a(f"v_add_f32 v{32+k}, v{32+k}, v{36+k}")
    a(f"""
v_mov_b32 v41, v40
s_nop 0
v_permlane16_swap_b32 v32, v34
v_permlane16_swap_b32 v33, v35
v_permlane16_swap_b32 v40, v41
v_add_f32 v32, v32, v34
v_add_f32 v33, v33, v35
v_add_f32 v40, v40, v41
v_add_f32_dpp v32, v32, v32 row_ror:8 row_mask:0xf bank_mask:0xf
v_add_f32_dpp v33, v33, v33 row_ror:8 row_mask:0xf bank_mask:0xf
v_add_f32_dpp v40, v40, v40 row_ror:8 row_mask:0xf bank_mask:0xf
v_rcp_f32 v40, v40
s_nop 0
v_mul_f32 v32, v32, v40
v_mul_f32 v33, v33, v40
v_cvt_pk_bf16_f32 v32, v32, v33
v_and_b32 v33, s45, v32
v_lshlrev_b32 v32, 16, v32
ds_write2_b32 v63, v32, v33 offset0:0 offset1:2
s_waitcnt lgkmcnt(0)
L_HOP1_DONE:
s_barrier""")
    stamp(7)
    for i in range(4):
        a(f"ds_read_b128 v[{X+4*i}:{X+4*i+3}], v10 offset:{OV+16*i}")
    a(f"""
s_waitcnt lgkmcnt(0)
s_branch L_FMA
L_FINAL:
v_add_f32 v{W}, v{W}, v5
v_cvt_pk_bf16_f32 v{W}, v{W}, v{W}
s_mov_b32 exec_lo, 0x000f000f
s_mov_b32 exec_hi, 0x000f000f
global_store_short v8, v{W}, s[24:25]
s_cmp_lg_u32 s2, 0
s_cbranch_scc1 {'L_STAMP' if stamps else 'L_END'}
s_mov_b64 exec, 1
v_mov_b32 v1, {EP}
v_mov_b32 v2, s59
global_store_dword v1, v2, s[28:29] sc1""")
    if stamps:
        a("L_STAMP:\ns_cmp_lg_u32 s3, 0\ns_cbranch_scc1 L_END")
        stamp(8)
        a(f"""
s_mov_b64 exec, 1
s_mul_i32 s38, s2, {NST*8}
s_add_u32 s38, s38, {128 << 20}
v_mov_b32 v1, s38
s_waitcnt lgkmcnt(0)""")
        for k in range(9):
            a(f"v_mov_b32 v2, s{64+2*k}\nv_mov_b32 v3, s{65+2*k}\nglobal_store_dwordx2 v1, v[2:3], s[28:29] offset:{8*k}\ns_nop 1")
    a("L_END:\ns_endpgm")
    return wrap(a.text(), 256, 512, LDS_TOTAL, vgpr=224)

if __name__ == '__main__':
    open('k3.s', 'w').write(gen())
    open('k3s.s', 'w').write(gen(stamps=True))
    open('k3_D3.s', 'w').write(gen(D=3))
    open('k3_p1.s', 'w').write(gen(preA=1))
```

```python
import sys, struct
sys.path.insert(0, 'exp')
from genlib import *

def f32bits(x):
    return struct.unpack('<I', struct.pack('<f', x))[0]

class A:
    def __init__(s): s.l = []
    def __call__(s, t):
        for ln in t.strip('\n').split('\n'):
            s.l.append('    ' + ln.strip() if not ln.strip().endswith(':') else ln.strip())
    def text(s): return '\n'.join(s.l) + '\n'

def gen(R=8, D=2, preA=2, gmode='div', rot=1, stamps=False, TO=40000, pol='nt', wpol='nt'):
    F = R - 1
    SC = 0; QL = SC + 16384; QS = QL + 2048; MLL = QS + 2048
    OV = MLL + 256; RING = 24576; LDS_TOTAL = RING + 4 * R * 4096
    assert OV + 1024 <= RING and LDS_TOTAL <= 163840
    NST = 12
    QP = 0; EP = 0x20000; HP = 0x80000; OP = 0x100000; ML = 0x200000; AP = 0x300000; BP = 0x400000
    LOG2E = f32bits(1.4426950408889634); SCALE = f32bits(128 ** -0.5); EPS = f32bits(1e-5)
    a = A()
    def stamp(k):
        if stamps: a(f"s_memrealtime s[{64+2*k}:{65+2*k}]")
    a("""
s_cmp_ge_u32 s2, 256
s_cbranch_scc1 L_END
s_load_dwordx16 s[4:19], s[0:1], 0
s_load_dwordx8 s[20:27], s[0:1], 64
s_load_dwordx2 s[28:29], s[0:1], 96
v_lshrrev_b32 v1, 6, v0
v_and_b32 v0, 63, v0
v_readfirstlane_b32 s3, v1""")
    if gmode == 'div':
        a("s_lshr_b32 s30, s2, 5\ns_and_b32 s31, s2, 31")
    else:
        a("s_and_b32 s30, s2, 7\ns_lshr_b32 s31, s2, 3")
    a("""
v_lshrrev_b32 v1, 4, v0
v_and_b32 v2, 15, v0
s_cmp_ge_u32 s3, 4
s_cbranch_scc1 L_HELP""")
    a(f"""
v_lshlrev_b32 v3, 1, v1
v_xor_b32 v3, v3, v2
v_lshlrev_b32 v3, 4, v3
v_lshl_add_u32 v10, v1, 8, v3
v_xor_b32 v11, 128, v10
v_xor_b32 v12, 16, v10
v_xor_b32 v13, 144, v10
s_lshl_b32 s36, s30, 23
s_lshl_b32 s37, s31, 2
s_add_u32 s37, s37, s3
s_lshl_b32 s37, s37, 12
s_add_u32 s36, s36, s37
s_mul_i32 s37, s30, {rot << 19}
s_and_b32 s37, s37, {(8 << 20) - 1}
s_mul_i32 s38, s3, {R * 4096}
s_add_u32 s38, s38, {RING}
s_add_u32 s39, s38, {R * 4096}
s_mov_b32 s40, s38
s_mov_b32 s47, s38
s_mov_b32 s49, 0
s_mov_b32 s41, 0
s_mov_b32 s34, 0x4000000
s_mov_b32 s35, 0x20000
s_waitcnt lgkmcnt(0)
s_mov_b32 s32, s6
s_mov_b32 s33, s7""")
    def issue(mode):
        a(f"""
s_mov_b32 m0, s47
s_add_u32 s42, s36, s37
buffer_load_dwordx4 v10, s[32:35], s42 offen {pol} lds
buffer_load_dwordx4 v11, s[32:35], s42 offen offset:1024 {pol} lds
buffer_load_dwordx4 v12, s[32:35], s42 offen offset:2048 {pol} lds
buffer_load_dwordx4 v13, s[32:35], s42 offen offset:3072 {pol} lds
s_add_u32 s37, s37, {1 << 19}
s_and_b32 s37, s37, {(8 << 20) - 1}
s_add_u32 s47, s47, 4096
s_cmp_ge_u32 s47, s39
s_cselect_b32 s47, s38, s47
s_add_u32 s41, s41, 1""")
        if mode == 'k':
            a("s_cmp_eq_u32 s41, 16\ns_cselect_b32 s32, s8, s32\ns_cselect_b32 s33, s9, s33")
        elif mode == 'v':
            a("s_cmp_ge_u32 s41, 32\ns_cselect_b32 s34, 0, s34")
    def adv():
        a("""
s_add_u32 s40, s40, 4096
s_cmp_ge_u32 s40, s39
s_cselect_b32 s40, s38, s40
s_add_u32 s49, s49, 1""")
    a(f"L_FILL:\ns_waitcnt vmcnt({4 * (D - 1)})")
    issue('f')
    a(f"""
s_cmp_lg_u32 s41, {preA}
s_cbranch_scc1 L_FILL2
s_barrier
L_FILL2:
s_cmp_lt_u32 s41, {F}
s_cbranch_scc1 L_FILL
v_lshlrev_b32 v3, 1, v2
v_and_b32 v3, 15, v3
v_lshrrev_b32 v4, 3, v2
v_or_b32 v3, v3, v4                   ; f(p)
v_xor_b32 v3, v3, v1
v_lshlrev_b32 v3, 4, v3
v_lshl_add_u32 v14, v2, 8, v3
v_lshrrev_b32 v3, 2, v2
v_lshl_or_b32 v3, v1, 2, v3           ; row
v_lshlrev_b32 v4, 1, v3
v_and_b32 v4, 15, v4
v_lshrrev_b32 v5, 3, v3
v_or_b32 v4, v4, v5                   ; f(row)
v_bfe_u32 v5, v2, 1, 1
v_xor_b32 v4, v4, v5
v_lshlrev_b32 v4, 4, v4
v_lshl_add_u32 v15, v3, 8, v4
v_and_b32 v5, 1, v2
v_lshl_add_u32 v15, v5, 3, v15
v_and_b32 v6, 7, v2                   ; n = head
v_lshl_add_u32 v3, v1, 3, v6
s_lshl_b32 s43, s3, 12
v_lshlrev_b32 v3, 3, v3
v_add_u32 v16, s43, v3
v_lshlrev_b32 v3, 4, v1
v_lshl_add_u32 v17, v6, 8, v3         ; Q addr
v_mov_b32 v18, 0xff800000
s_mov_b32 s44, {SCALE}
s_mov_b32 s45, 0xffff0000
s_mov_b32 s46, {LOG2E}
v_mov_b32 v19, 0""")
    for i in range(32):
        a(f"v_mov_b32 v{96 + i}, 0")
    a("s_barrier")
    stamp(0)
    a(f"""
ds_read_b128 v[20:23], v17 offset:{QL}
ds_read_b128 v[24:27], v17 offset:{QL+64}
ds_read_b128 v[28:31], v17 offset:{QL+128}
ds_read_b128 v[32:35], v17 offset:{QL+192}
L_K:
v_add_u32 v4, s40, v14
v_xor_b32 v5, 64, v4
v_xor_b32 v7, 128, v4
v_xor_b32 v8, 192, v4
s_cmp_lt_u32 s49, {F}
s_cbranch_scc1 L_K_CU
s_waitcnt vmcnt({4 * (D - 1)})
L_K_ISSUE:""")
    issue('k')
    a(f"""
L_K_BODY:
ds_read_b128 v[40:43], v4
ds_read_b128 v[44:47], v5
ds_read_b128 v[48:51], v7
ds_read_b128 v[52:55], v8
s_waitcnt lgkmcnt(0)
v_mfma_f32_16x16x32_bf16 v[56:59], v[40:43], v[20:23], 0
v_mfma_f32_16x16x32_bf16 v[56:59], v[44:47], v[24:27], v[56:59]
v_mfma_f32_16x16x32_bf16 v[56:59], v[48:51], v[28:31], v[56:59]
v_mfma_f32_16x16x32_bf16 v[56:59], v[52:55], v[32:35], v[56:59]""")
    adv()
    a(f"""
s_nop 3
v_cvt_pk_bf16_f32 v60, v56, v57
v_cvt_pk_bf16_f32 v61, v58, v59
v_max3_f32 v18, v18, v56, v57
v_max3_f32 v18, v18, v58, v59
v_lshlrev_b32 v62, 16, v60
v_and_b32 v63, s45, v60
v_lshlrev_b32 v64, 16, v61
v_and_b32 v65, s45, v61
v_mul_f32 v62, s44, v62
v_mul_f32 v63, s44, v63
v_mul_f32 v64, s44, v64
v_mul_f32 v65, s44, v65
v_cvt_pk_bf16_f32 v60, v62, v63
v_cvt_pk_bf16_f32 v61, v64, v65
ds_write_b64 v16, v[60:61] offset:{SC}
v_add_u32 v16, 256, v16
s_cmp_lt_u32 s49, 16
s_cbranch_scc1 L_K""")
    stamp(1)
    a(f"""
v_mov_b32 v3, v18
v_subrev_u32 v16, 4096, v16
s_nop 0
v_permlane16_swap_b32 v18, v3
v_max_f32 v18, v18, v3
v_mov_b32 v3, v18
s_nop 1
v_permlane32_swap_b32 v18, v3
v_max_f32 v18, v18, v3
v_cvt_pk_bf16_f32 v18, v18, v18
v_and_b32 v18, s45, v18
v_mul_f32 v18, s44, v18
v_cvt_pk_bf16_f32 v18, v18, v18
v_and_b32 v18, s45, v18
L_V:
v_add_u32 v40, s40, v15
v_xor_b32 v41, 32, v40
v_xor_b32 v42, 64, v40
v_xor_b32 v43, 96, v40
v_xor_b32 v44, 128, v40
v_xor_b32 v45, 160, v40
v_xor_b32 v46, 192, v40
v_xor_b32 v47, 224, v40
ds_read_b64 v[60:61], v16 offset:{SC}
v_add_u32 v16, 256, v16
s_waitcnt lgkmcnt(0)
v_lshlrev_b32 v62, 16, v60
v_and_b32 v63, s45, v60
v_lshlrev_b32 v64, 16, v61
v_and_b32 v65, s45, v61
v_sub_f32 v62, v62, v18
v_sub_f32 v63, v63, v18
v_sub_f32 v64, v64, v18
v_sub_f32 v65, v65, v18
v_mul_f32 v62, s46, v62
v_mul_f32 v63, s46, v63
v_mul_f32 v64, s46, v64
v_mul_f32 v65, s46, v65
v_exp_f32 v62, v62
v_exp_f32 v63, v63
v_exp_f32 v64, v64
v_exp_f32 v65, v65
s_waitcnt vmcnt({4 * (D - 1)})""")
    for d in range(8):
        a(f"ds_read_b64_tr_b16 v[{70 + 2 * d}:{71 + 2 * d}], v{40 + d}")
    issue('v')
    a(f"""
v_cvt_pk_bf16_f32 v66, v62, v63
v_cvt_pk_bf16_f32 v67, v64, v65
v_add_f32 v62, v62, v63
v_add_f32 v64, v64, v65
v_add_f32 v19, v19, v62
v_add_f32 v19, v19, v64
s_waitcnt lgkmcnt(0)""")
    for d in range(8):
        a(f"v_mfma_f32_16x16x16_bf16 v[{96 + 4 * d}:{99 + 4 * d}], v[{70 + 2 * d}:{71 + 2 * d}], v[66:67], v[{96 + 4 * d}:{99 + 4 * d}]")
    adv()
    a(f"""
s_cmp_lt_u32 s49, 32
s_cbranch_scc1 L_V
v_mov_b32 v3, v19
v_xor_b32 v4, v1, v6
v_lshlrev_b32 v4, 4, v4
v_permlane16_swap_b32 v19, v3
v_add_f32 v19, v19, v3
v_mov_b32 v3, v19
v_lshl_add_u32 v4, v6, 9, v4
v_add_u32 v40, s43, v4
v_permlane32_swap_b32 v19, v3
v_add_f32 v19, v19, v3
s_lshl_b32 s47, s3, 6
v_lshlrev_b32 v5, 3, v6
v_add_u32 v5, s47, v5""")
    for d in range(1, 8):
        a(f"v_xor_b32 v{40 + d}, {64 * d}, v40")
    for d in range(8):
        a(f"ds_write_b128 v{40 + d}, v[{96 + 4 * d}:{99 + 4 * d}] offset:{SC}")
    a(f"""
ds_write_b64 v5, v[18:19] offset:{MLL}
s_waitcnt lgkmcnt(0)""")
    stamp(2)
    a("s_barrier")
    if stamps:
        a(f"""
s_cmp_lg_u32 s3, 0
s_cbranch_scc1 L_END
s_mov_b64 exec, 1
s_mul_i32 s38, s2, {NST*8}
s_add_u32 s38, s38, {(128 << 20) + 72}
v_mov_b32 v1, s38
s_waitcnt lgkmcnt(0)""")
        for k in range(3):
            a(f"v_mov_b32 v2, s{64+2*k}\nv_mov_b32 v3, s{65+2*k}\nglobal_store_dwordx2 v1, v[2:3], s[28:29] offset:{8*k}\ns_nop 1")
    a(f"""
s_waitcnt vmcnt(0)
s_endpgm
L_K_CU:
s_waitcnt vmcnt({4 * D})
s_cmp_lt_u32 s49, {D}
s_cbranch_scc1 L_K_ISSUE
s_branch L_K_BODY""")

    W = 64; U = 96; X = 16; ACC = 32; Z = 48; SA = 160; SB = 168; XF = 176; G = 176; W1 = 192
    VT = 61
    def tile(wreg, vaddr, sbase, stride_s):
        for t in range(8):
            a(f"global_load_dwordx4 v[{wreg+4*t}:{wreg+4*t+3}], v{vaddr}, s[{sbase}:{sbase+1}] {wpol}")
            if t < 7: a(f"v_add_u32 v{vaddr}, {stride_s}, v{vaddr}")
    def tile2k(wreg, vaddr, sbase):
        for t in range(8):
            a(f"global_load_dwordx4 v[{wreg+4*t}:{wreg+4*t+3}], v{vaddr}, s[{sbase}:{sbase+1}] offset:{(t & 3) * 2048 - 4096} {wpol}")
            if t == 3: a(f"v_add_u32 v{vaddr}, 0x2000, v{vaddr}")
    def check(regs, acc, sx):
        for r in regs: a(f"v_xor_b32 v{r}, s{sx}, v{r}")
    def orred(regs, acc):
        a(f"v_or3_b32 v{acc}, v{regs[0]}, v{regs[1]}, v{regs[2]}")
        rest = regs[3:]
        while len(rest) >= 2:
            a(f"v_or3_b32 v{acc}, v{acc}, v{rest[0]}, v{rest[1]}"); rest = rest[2:]
        if rest: a(f"v_or_b32 v{acc}, v{acc}, v{rest[0]}")
    a(f"""
L_HELP:
s_setprio 3
s_sub_u32 s3, s3, 4                   ; hw
s_and_b32 s32, s2, 63                 ; cg
s_lshr_b32 s33, s2, 6                 ; rs
v_lshrrev_b32 v3, 3, v0               ; l>>3
v_and_b32 v4, 7, v0                   ; l&7
s_lshl_b32 s36, s3, 6
v_lshl_add_u32 v5, v3, 3, s36         ; hw*64 + (l>>3)*8
s_lshl_b32 s37, s33, 8
v_add_u32 v6, s37, v5                 ; rowA
v_lshlrev_b32 v8, 5, v0
v_lshlrev_b32 v9, 1, v6
v_lshlrev_b32 v11, 13, v6
v_lshl_add_u32 v11, v4, 4, v11
s_lshl_b32 s37, s32, 7
v_add_u32 v11, s37, v11
s_mov_b32 s42, 8192
s_cmp_ge_u32 s2, 224
s_cselect_b32 s34, 224, 0
s_sub_u32 s34, s2, s34                ; j1 = j mod 224
s_lshr_b32 s43, s34, 1
s_mul_i32 s35, s34, 1171
s_lshr_b32 s35, s35, 16               ; rs1 = j1/56
s_mul_i32 s36, s35, 56
s_sub_u32 s34, s34, s36               ; cg1
s_lshl_b32 s37, s35, 8
v_add_u32 v7, s37, v5                 ; rowB
s_waitcnt lgkmcnt(0)""")
    stamp(0)
    a(f"""
s_load_dword s59, s[28:29], {EP}
global_load_dwordx4 v[{XF}:{XF+3}], v8, s[4:5]
global_load_dwordx4 v[{XF+4}:{XF+7}], v8, s[4:5] offset:16
global_load_dwordx4 v[{XF+8}:{XF+11}], v8, s[4:5] offset:2048
global_load_dwordx4 v[{XF+12}:{XF+15}], v8, s[4:5] offset:2064
global_load_dwordx4 v[{SA}:{SA+3}], v9, s[4:5]
global_load_dwordx4 v[{SA+4}:{SA+7}], v9, s[4:5] offset:2048""")
    tile(W, 11, 10, 's42')
    a(f"""
v_lshlrev_b32 v10, 1, v7
v_mul_u32_u24 v11, 7168, v7
v_lshl_add_u32 v11, v4, 4, v11
s_lshl_b32 s37, s34, 7
v_add_u32 v11, s37, v11
s_mov_b32 s42, 7168
global_load_dwordx4 v[{SB}:{SB+3}], v10, s[4:5]
global_load_dwordx4 v[{SB+4}:{SB+7}], v10, s[4:5] offset:2048""")
    tile(W1, 11, 16, 's42')
    a(f"""
s_mov_b32 s45, 0xffff0000
s_mov_b32 s46, {LOG2E}
s_mov_b32 s57, 0xffffff00
s_mov_b32 s48, 0                      ; pass
v_and_b32 v57, 1, v0
v_lshl_add_u32 v57, v57, 2, v1
s_and_b32 s38, s2, 127
s_lshl_b32 s38, s38, 3
v_add_u32 v57, s38, v57
v_lshlrev_b32 v57, 1, v57
v_bfe_u32 v58, v0, 1, 1
v_lshl_add_u32 v8, v58, 11, v57
global_load_ushort v7, v57, s[22:23]
global_load_ushort v6, v8, s[4:5]
; b1: f = rb'*32 + (l&7)*4 + (l>>4)
s_lshl_b32 s38, s43, 5
v_lshl_add_u32 v57, v4, 2, v1
v_add_u32 v58, s38, v57
v_lshlrev_b32 v58, 1, v58
global_load_ushort v5, v58, s[18:19]
v_and_b32 v58, 1, v3
v_lshlrev_b32 v58, 2, v58
v_lshl_add_u32 v57, v57, 3, v58
s_lshl_b32 s38, s3, 8
v_add_u32 v62, s38, v57
s_lshr_b32 s36, s30, 2                ; b
s_and_b32 s37, s30, 3                 ; kvh
s_lshl_b32 s38, s30, 17
s_lshl_b32 s39, s3, 15
s_add_u32 s38, s38, s39
s_lshl_b32 s39, s31, 7
s_add_u32 s38, s38, s39
s_add_u32 s38, s38, {OP}
v_lshlrev_b32 v12, 12, v3
v_lshl_add_u32 v12, v4, 4, v12
v_add_u32 v12, s38, v12
s_lshl_b32 s38, s30, 11
s_lshl_b32 s39, s3, 9
s_add_u32 s38, s38, s39
s_and_b32 s39, s31, 7
s_lshl_b32 s39, s39, 5
s_add_u32 s38, s38, s39
s_lshr_b32 s39, s31, 3
s_lshl_b32 s39, s39, 3
s_add_u32 s38, s38, s39
s_add_u32 s38, s38, {ML}
v_lshrrev_b32 v58, 5, v0              ; l>>5
v_lshl_add_u32 v56, v58, 8, s38
s_and_b32 s38, s2, 1
s_lshl_b32 s38, s38, 19
s_lshl_b32 s39, s3, 17
s_add_u32 s38, s38, s39
s_lshr_b32 s39, s2, 1
s_lshl_b32 s39, s39, 6
s_add_u32 s38, s38, s39
s_add_u32 s38, s38, {BP}
v_lshlrev_b32 v14, 13, v2
v_lshl_add_u32 v14, v1, 4, v14
v_add_u32 v14, s38, v14
s_lshl_b32 s38, s34, 13
s_lshl_b32 s39, s35, 10
s_add_u32 s38, s38, s39
s_lshl_b32 s39, s3, 8
s_add_u32 s38, s38, s39
s_add_u32 s38, s38, {HP}
v_lshrrev_b32 v15, 2, v4
v_lshlrev_b32 v15, 12, v15
v_lshl_add_u32 v15, v58, 7, v15
v_and_b32 v57, 3, v0
v_lshl_add_u32 v15, v57, 5, v15
v_and_b32 v57, 16, v0
v_add3_u32 v15, v15, v57, s38
v_lshlrev_b32 v13, 8, v58
v_lshl_add_u32 v13, v4, 5, v13
s_lshl_b32 s38, s3, 9
v_add3_u32 v13, v13, v57, s38
s_and_b32 s39, s2, 1
s_lshl_b32 s39, s39, 10
s_lshl_b32 s38, s3, 8
s_add_u32 s38, s38, s39
s_add_u32 s38, s38, 4096
v_lshlrev_b32 v9, 14, v1
v_lshl_add_u32 v9, v2, 4, v9
v_add_u32 v9, s38, v9
s_waitcnt vmcnt(21) lgkmcnt(0)
s_add_u32 s59, s59, 1
s_and_b32 s56, s59, 0xff
s_and_b32 s58, s59, 0xffff
v_mov_b32 v{VT}, s56""")
    for i in range(16):
        a(f"v_lshlrev_b32 v{U+2*i}, 16, v{XF+i}\nv_and_b32 v{U+2*i+1}, s45, v{XF+i}")
    def red2(r0, r1, t):
        a(f"""
s_nop 1
v_permlane32_swap_b32 v{r0}, v{r1}
v_add_f32 v{r0}, v{r0}, v{r1}
v_mov_b32 v{t}, v{r0}
s_nop 1
v_permlane16_swap_b32 v{r0}, v{t}
v_add_f32 v{r0}, v{r0}, v{t}""")
        for n in (8, 4, 2, 1):
            a(f"s_nop 1\nv_add_f32_dpp v{r0}, v{r0}, v{r0} row_ror:{n} row_mask:0xf bank_mask:0xf")
    for i in range(1, 8):
        for b in range(2):
            base = U + 16 * b
            if i == 1: a(f"v_pk_add_f32 v[{48+2*b}:{49+2*b}], v[{base}:{base+1}], v[{base+2}:{base+3}]")
            else: a(f"v_pk_add_f32 v[{48+2*b}:{49+2*b}], v[{48+2*b}:{49+2*b}], v[{base+2*i}:{base+2*i+1}]")
    for b in range(2):
        a(f"v_add_f32 v{48+2*b}, v{48+2*b}, v{49+2*b}")
    red2(48, 50, 49)
    a(f"""
v_mul_f32 v48, {f32bits(1/1024)}, v48
s_nop 0
v_readlane_b32 s50, v48, 0
v_readlane_b32 s52, v48, 32
s_mov_b32 s51, s50
s_mov_b32 s53, s52""")
    for i in range(8):
        for b in range(2):
            base = U + 16 * b
            a(f"v_pk_add_f32 v[{base+2*i}:{base+2*i+1}], v[{base+2*i}:{base+2*i+1}], s[{50+2*b}:{51+2*b}] neg_lo:[0,1] neg_hi:[0,1]")
    for i in range(8):
        for b in range(2):
            base = U + 16 * b
            if i == 0: a(f"v_pk_mul_f32 v[{50+2*b}:{51+2*b}], v[{base}:{base+1}], v[{base}:{base+1}]")
            else: a(f"v_pk_fma_f32 v[{50+2*b}:{51+2*b}], v[{base+2*i}:{base+2*i+1}], v[{base+2*i}:{base+2*i+1}], v[{50+2*b}:{51+2*b}]")
    for b in range(2):
        a(f"v_add_f32 v{50+2*b}, v{50+2*b}, v{51+2*b}")
    red2(50, 52, 51)
    a(f"""
v_mul_f32 v50, {f32bits(1/1024)}, v50
v_cvt_pk_bf16_f32 v50, v50, v48
v_and_b32 v48, s45, v50
v_lshlrev_b32 v50, 16, v50
v_add_f32 v50, {EPS}, v50
v_cvt_pk_bf16_f32 v50, v50, v50
v_and_b32 v50, s45, v50
v_sqrt_f32 v51, v50
s_nop 0
v_cvt_pk_bf16_f32 v51, v51, v51
v_and_b32 v51, s45, v51               ; s
v_rcp_f32 v52, v51
v_readlane_b32 s50, v48, 0
v_readlane_b32 s51, v48, 32
v_readlane_b32 s52, v51, 0
v_readlane_b32 s53, v51, 32
v_readlane_b32 s54, v52, 0
v_readlane_b32 s55, v52, 32
s_nop 0
L_NORM:""")
    for t in range(8):
        r0 = SA + t // 2; r1 = SA + 4 + t // 2
        x = X + 2 * t
        if t % 2 == 0:
            a(f"v_lshlrev_b32 v{x}, 16, v{r0}\nv_lshlrev_b32 v{x+1}, 16, v{r1}")
        else:
            a(f"v_and_b32 v{x}, s45, v{r0}\nv_and_b32 v{x+1}, s45, v{r1}")
        a(f"""
v_pk_add_f32 v[{x}:{x+1}], v[{x}:{x+1}], s[50:51] neg_lo:[0,1] neg_hi:[0,1]
v_cvt_pk_bf16_f32 v48, v{x}, v{x+1}
v_lshlrev_b32 v{x}, 16, v48
v_and_b32 v{x+1}, s45, v48
v_pk_mul_f32 v[50:51], v[{x}:{x+1}], s[54:55]
v_pk_fma_f32 v[52:53], v[50:51], s[52:53], v[{x}:{x+1}] neg_lo:[1,0,0] neg_hi:[1,0,0]
v_pk_fma_f32 v[50:51], v[52:53], s[54:55], v[50:51]
v_cvt_pk_bf16_f32 v48, v50, v51
v_lshlrev_b32 v{x}, 16, v48
v_and_b32 v{x+1}, s45, v48""")
    a("""
s_cmp_eq_u32 s48, 1
s_cbranch_scc1 L_UN1W
s_waitcnt vmcnt(11)""")
    stamp(1)
    a("L_UN0:")
    for i in range(32):
        a(f"v_lshlrev_b32 v{U+2*i}, 16, v{W+i}\nv_and_b32 v{U+2*i+1}, s45, v{W+i}")
    a("""
s_branch L_FMA
L_UN1W:
s_waitcnt vmcnt(12)
L_UN1:""")
    for i in range(32):
        a(f"v_lshlrev_b32 v{U+2*i}, 16, v{W1+i}\nv_and_b32 v{U+2*i+1}, s45, v{W1+i}")
    a("""
s_cmp_eq_u32 s48, 3
s_cbranch_scc1 L_TAIL
L_FMA:""")
    for t in range(8):
        for c in range(8):
            u = U + 8 * t + (c & ~1)
            sel = "op_sel:[1,0,0] op_sel_hi:[1,1,1]" if c & 1 else "op_sel:[0,0,0] op_sel_hi:[0,1,1]"
            if t == 0:
                sel2 = "op_sel:[1,0] op_sel_hi:[1,1]" if c & 1 else "op_sel:[0,0] op_sel_hi:[0,1]"
                a(f"v_pk_mul_f32 v[{ACC+2*c}:{ACC+2*c+1}], v[{u}:{u+1}], v[{X}:{X+1}] {sel2}")
            else:
                a(f"v_pk_fma_f32 v[{ACC+2*c}:{ACC+2*c+1}], v[{u}:{u+1}], v[{X+2*t}:{X+2*t+1}], v[{ACC+2*c}:{ACC+2*c+1}] {sel}")
    for c in range(8):
        a(f"v_permlane32_swap_b32 v{ACC+2*c}, v{ACC+2*c+1}")
    for c in range(8):
        a(f"v_add_f32 v{Z+c}, v{ACC+2*c}, v{ACC+2*c+1}")
    for i in range(4):
        a(f"v_permlane16_swap_b32 v{Z+i}, v{Z+4+i}")
    for i in range(4):
        a(f"v_add_f32 v{Z+i}, v{Z+i}, v{Z+4+i}")
    a("""
s_cmp_ge_u32 s48, 2
s_cbranch_scc1 L_PUB2""")
    for i in range(4):
        a(f"v_add_f32_dpp v{Z+i}, v{Z+i}, v{Z+i} row_ror:8 row_mask:0xf bank_mask:0xf")
    a(f"""
s_cmp_eq_u32 s48, 1
s_cbranch_scc1 L_POST1
ds_write_b128 v13, v[{Z}:{Z+3}] offset:{QS}
s_mov_b32 s48, 1
s_lshl_b32 s38, s36, 14
s_lshl_b32 s39, s37, 12
s_add_u32 s38, s38, s39
s_lshl_b32 s39, s3, 10
s_add_u32 s38, s38, s39
v_lshl_add_u32 v10, v0, 4, s38
v_add_u32 v13, 0x10000, v10
s_lshl_b32 s38, s43, 16
v_add_u32 v11, s38, v9""")
    for i in range(8):
        a(f"v_mov_b32 v{SA+i}, v{SB+i}")
    a(f"""
s_waitcnt lgkmcnt(0)
s_barrier""")
    stamp(2)
    a(f"""
s_cmp_lg_u32 s3, 0
s_cbranch_scc1 L_QP_DONE
v_and_b32 v57, 31, v0
v_lshlrev_b32 v57, 4, v57
ds_read_b128 v[32:35], v57 offset:{QS}
ds_read_b128 v[36:39], v57 offset:{QS+512}
ds_read_b128 v[40:43], v57 offset:{QS+1024}
ds_read_b128 v[44:47], v57 offset:{QS+1536}
s_lshl_b32 s38, s33, 15
s_lshl_b32 s39, s32, 8
s_add_u32 s38, s38, s39
v_and_b32 v58, 1, v1
v_lshlrev_b32 v58, 14, v58
v_lshl_add_u32 v58, v2, 4, v58
v_add_u32 v58, s38, v58
s_waitcnt lgkmcnt(0)
v_pk_add_f32 v[32:33], v[32:33], v[36:37]
v_pk_add_f32 v[34:35], v[34:35], v[38:39]
v_pk_add_f32 v[40:41], v[40:41], v[44:45]
v_pk_add_f32 v[42:43], v[42:43], v[46:47]
v_pk_add_f32 v[32:33], v[32:33], v[40:41]
v_pk_add_f32 v[34:35], v[34:35], v[42:43]""")
    for i in range(4):
        a(f"v_and_or_b32 v{32+i}, v{32+i}, s57, v{VT}")
    a(f"""
s_mov_b32 exec_hi, 0
global_store_dwordx4 v58, v[32:35], s[28:29] sc1
s_mov_b32 exec_hi, -1
L_QP_DONE:""")
    def qgather():
        a(f"""
global_load_dwordx4 v[{G}:{G+3}], v10, s[28:29] sc1
global_load_dwordx4 v[{G+8}:{G+11}], v13, s[28:29] sc1
v_add_u32 v57, 0x8000, v10
v_add_u32 v58, 0x8000, v13
global_load_dwordx4 v[{G+4}:{G+7}], v57, s[28:29] sc1
global_load_dwordx4 v[{G+12}:{G+15}], v58, s[28:29] sc1""")
    qgather()
    tile2k(W, 11, 20)
    a("s_branch L_NORM\nL_POST1:")
    for i in range(4):
        a(f"v_and_or_b32 v{Z+i}, v{Z+i}, s57, v{VT}")
    a(f"""
s_mov_b32 exec_lo, 0x00ff00ff
s_mov_b32 exec_hi, 0x00ff00ff
global_store_dwordx4 v15, v[{Z}:{Z+3}], s[28:29] sc1
s_mov_b64 exec, -1
s_lshr_b32 s38, s2, 1
s_lshl_b32 s38, s38, 16
v_add_u32 v11, s38, v9""")
    tile2k(W1, 11, 12)
    stamp(3)
    a(f"""
s_mov_b32 s49, {TO}
s_waitcnt vmcnt(17)
L_POLLQ:""")
    check(range(G, G + 16), 60, 56)
    orred(list(range(G, G + 16)), 60)
    a(f"""
v_and_b32 v60, 0xff, v60
v_cmp_ne_u32 vcc, 0, v60
s_cbranch_vccz L_POLLQ_OK
s_sub_u32 s49, s49, 1
s_cbranch_scc1 L_POLLQ_OK
s_sleep 2""")
    qgather()
    a(f"""
s_waitcnt vmcnt(0)
s_branch L_POLLQ
L_POLLQ_OK:""")
    for h in range(2):
        a(f"v_pk_add_f32 v[{G+2*h}:{G+2*h+1}], v[{G+2*h}:{G+2*h+1}], v[{G+4+2*h}:{G+5+2*h}]")
        a(f"v_pk_add_f32 v[{G+8+2*h}:{G+9+2*h}], v[{G+8+2*h}:{G+9+2*h}], v[{G+12+2*h}:{G+13+2*h}]")
        a(f"v_pk_add_f32 v[{G+2*h}:{G+2*h+1}], v[{G+2*h}:{G+2*h+1}], v[{G+8+2*h}:{G+9+2*h}]")
        a(f"v_cvt_pk_bf16_f32 v{32+h}, v{G+2*h}, v{G+2*h+1}")
    a(f"""
s_lshl_b32 s38, s3, 9
v_lshl_add_u32 v58, v0, 3, s38
ds_write_b64 v58, v[32:33] offset:{QL}
s_waitcnt lgkmcnt(0)""")
    stamp(4)
    a(f"""
s_barrier
s_mov_b32 s48, 2
s_lshl_b32 s38, s43, 12
s_add_u32 s38, s38, {HP}
v_lshl_add_u32 v57, v0, 4, s38
s_lshl_b32 s38, s3, 8
v_lshl_add_u32 v10, v1, 6, s38
s_cmp_ge_u32 s2, 224
s_cselect_b32 s57, 0, s57
s_mov_b32 s49, {TO}
L_POLLH:""")
    for i in range(4):
        a(f"global_load_dwordx4 v[{32+4*i}:{35+4*i}], v57, s[28:29] offset:{1024*i} sc1")
    a("s_waitcnt vmcnt(0)")
    check(range(32, 48), 60, 56)
    orred(list(range(32, 48)), 60)
    a(f"""
v_and_b32 v60, 0xff, v60
v_cmp_ne_u32 vcc, 0, v60
s_cbranch_vccz L_POLLH_OK
s_sub_u32 s49, s49, 1
s_cbranch_scc1 L_POLLH_OK
s_sleep 8
s_branch L_POLLH
L_POLLH_OK:
v_pk_add_f32 v[32:33], v[32:33], v[36:37]
v_pk_add_f32 v[34:35], v[34:35], v[38:39]
v_pk_add_f32 v[40:41], v[40:41], v[44:45]
v_pk_add_f32 v[42:43], v[42:43], v[46:47]
v_pk_add_f32 v[32:33], v[32:33], v[40:41]
v_pk_add_f32 v[34:35], v[34:35], v[42:43]
s_nop 1
v_permlane32_swap_b32 v32, v34
v_permlane32_swap_b32 v33, v35
v_add_f32 v32, v32, v34
v_add_f32 v33, v33, v35
s_nop 1
v_permlane16_swap_b32 v32, v33
v_add_f32 v32, v32, v33
v_cvt_pk_bf16_f32 v32, v32, v32
v_and_b32 v32, s45, v32
v_lshlrev_b32 v5, 16, v5
v_add_f32 v32, v32, v5
v_cvt_pk_bf16_f32 v32, v32, v32
v_and_b32 v32, s45, v32
v_cmp_gt_f32 vcc, v32, 0
s_nop 1
v_cndmask_b32 v32, 0, v32, vcc
v_mul_f32 v32, v32, v32
v_cvt_pk_bf16_f32 v32, v32, v32
v_and_b32 v32, s45, v32
ds_write_b32 v62, v32 offset:{OV}
s_waitcnt lgkmcnt(0)""")
    for i in range(4):
        a(f"ds_read_b128 v[{X+4*i}:{X+4*i+3}], v10 offset:{OV+16*i}")
    a(f"""
s_waitcnt lgkmcnt(0)
s_branch L_UN0
L_PUB2:""")
    for i in range(4):
        a(f"v_and_or_b32 v{Z+i}, v{Z+i}, s57, v{VT}")
    a(f"""
global_store_dwordx4 v14, v[{Z}:{Z+3}], s[28:29] sc1
s_cmp_lg_u32 s3, 0
s_cbranch_scc1 L_HOP2_DONE
s_cmp_ge_u32 s2, 128
s_cbranch_scc1 L_HOP2_DONE
s_cmp_eq_u32 s48, 2
s_cselect_b32 s38, {BP - AP}, 0
s_cselect_b32 s40, 16, 0
s_lshl_b32 s39, s2, 13
s_add_u32 s38, s38, s39
s_add_u32 s38, s38, {AP + 4096}
v_lshl_add_u32 v57, v0, 4, s38
s_mov_b32 s49, {TO}
L_POLL2:""")
    for i in range(8):
        a(f"global_load_dwordx4 v[{W+4*i}:{W+4*i+3}], v57, s[28:29] offset:{1024*i-4096} sc1")
    a(f"s_waitcnt vmcnt(4)")
    check(range(W, W + 16), 60, 56)
    a(f"s_waitcnt vmcnt(0)")
    check(range(W + 16, W + 32), 60, 56)
    orred(list(range(W, W + 32)), 60)
    a(f"""
v_and_b32 v60, 0xff, v60
v_cmp_ne_u32 vcc, 0, v60
s_cbranch_vccz L_POLL2_OK
s_cmp_eq_u32 s40, 0
s_cbranch_scc1 L_POLL2_NS
s_sleep 16
L_POLL2_NS:
s_sub_u32 s49, s49, 1
s_cbranch_scc0 L_POLL2
L_POLL2_OK:""")
    for s in (16, 8, 4):
        for i in range(0, s, 2):
            a(f"v_pk_add_f32 v[{W+i}:{W+i+1}], v[{W+i}:{W+i+1}], v[{W+s+i}:{W+s+i+1}]")
    a(f"""
s_nop 1
v_permlane32_swap_b32 v{W}, v{W+2}
v_permlane32_swap_b32 v{W+1}, v{W+3}
v_add_f32 v{W}, v{W}, v{W+2}
v_add_f32 v{W+1}, v{W+1}, v{W+3}
s_nop 1
v_permlane16_swap_b32 v{W}, v{W+1}
v_add_f32 v{W}, v{W}, v{W+1}
s_nop 1
v_add_f32_dpp v{W}, v{W}, v{W} row_ror:8 row_mask:0xf bank_mask:0xf
s_nop 1
v_add_f32_dpp v{W}, v{W}, v{W} row_ror:4 row_mask:0xf bank_mask:0xf
v_cvt_pk_bf16_f32 v{W}, v{W}, v{W}
v_and_b32 v{W}, s45, v{W}
v_lshlrev_b32 v7, 16, v7
v_add_f32 v{W}, v{W}, v7
v_cvt_pk_bf16_f32 v{W}, v{W}, v{W}
v_and_b32 v{W}, s45, v{W}
s_cmp_eq_u32 s48, 3
s_cbranch_scc1 L_FINAL
v_mov_b32 v5, v{W}                    ; B
v_mov_b32 v7, v6
L_HOP2_DONE:
s_cmp_eq_u32 s48, 3
s_cbranch_scc1 {'L_STAMP' if stamps else 'L_END'}""")
    stamp(5)
    a(f"""
v_add_u32 v14, {(AP - BP) & 0xffffffff}, v14
s_mov_b32 s57, 0xffffff00
s_mov_b32 s48, 3
s_branch L_UN1
L_TAIL:
v_lshrrev_b32 v57, 5, v0
s_lshl_b32 s38, s3, 1
v_add_u32 v57, s38, v57               ; head
v_and_b32 v58, 31, v0
v_xor_b32 v58, v58, v57
v_lshlrev_b32 v58, 4, v58
v_lshl_add_u32 v58, v57, 9, v58
v_lshlrev_b32 v57, 3, v57
s_lshr_b32 s38, s2, 1
s_lshl_b32 s39, s38, 12
s_add_u32 s39, s39, {OP}
v_lshl_add_u32 v59, v0, 4, s39
v_add_u32 v13, 0x80000, v59
s_lshr_b32 s38, s38, 2
s_lshl_b32 s38, s38, 8
s_add_u32 s38, s38, {ML}
v_lshl_add_u32 v62, v3, 5, s38
v_add_u32 v15, 8192, v62
v_lshlrev_b32 v10, 6, v1
v_lshlrev_b32 v63, 5, v4
v_and_b32 v60, 16, v0
v_add_u32 v63, v63, v60
v_lshrrev_b32 v60, 5, v0
v_lshl_add_u32 v63, v60, 2, v63
v_add_u32 v63, {OV}, v63
s_barrier""")
    stamp(6)
    for w in range(4):
        a(f"ds_read_b64 v[{16+2*w}:{17+2*w}], v57 offset:{MLL+64*w}")
    for w in range(4):
        a(f"ds_read_b128 v[{32+4*w}:{35+4*w}], v58 offset:{SC+4096*w}")
    a(f"""
s_waitcnt lgkmcnt(4)
v_max3_f32 v24, v16, v18, v20
v_max_f32 v24, v24, v22""")
    for w in range(4):
        a(f"v_sub_f32 v{16+2*w}, v{16+2*w}, v24")
    for w in range(4):
        a(f"v_mul_f32 v{16+2*w}, s46, v{16+2*w}")
    for w in range(4):
        a(f"v_exp_f32 v{16+2*w}, v{16+2*w}")
    a(f"""
s_waitcnt lgkmcnt(0)
v_pk_mul_f32 v[32:33], v[32:33], v[16:17] op_sel_hi:[1,0]
v_pk_mul_f32 v[34:35], v[34:35], v[16:17] op_sel_hi:[1,0]""")
    for w in range(1, 4):
        for h in range(2):
            a(f"v_pk_fma_f32 v[{32+2*h}:{33+2*h}], v[{32+4*w+2*h}:{33+4*w+2*h}], v[{16+2*w}:{17+2*w}], v[{32+2*h}:{33+2*h}] op_sel_hi:[1,0,1]")
    for i in range(4):
        a(f"v_and_or_b32 v{32+i}, v{32+i}, s57, v{VT}")
    a(f"""
global_store_dwordx4 v12, v[32:35], s[28:29] sc1
v_mul_f32 v25, v16, v17
v_fma_f32 v25, v18, v19, v25
v_fma_f32 v25, v20, v21, v25
v_fma_f32 v25, v22, v23, v25
v_or_b32 v24, s58, v24
v_and_or_b32 v25, v25, s57, v{VT}
s_mov_b32 exec_lo, 1
s_mov_b32 exec_hi, 1
global_store_dwordx2 v56, v[24:25], s[28:29] sc1
s_mov_b64 exec, -1
s_cmp_lg_u32 s3, 0
s_cbranch_scc1 L_HOP1_DONE
s_mov_b32 s49, {TO}
L_POLL1:""")
    a(f"global_load_dwordx4 v[16:19], v62, s[28:29] sc1")
    a(f"global_load_dwordx4 v[20:23], v62, s[28:29] offset:16 sc1")
    a(f"global_load_dwordx4 v[24:27], v15, s[28:29] sc1")
    a(f"global_load_dwordx4 v[28:31], v15, s[28:29] offset:16 sc1")
    for b in range(2):
        for i in range(4):
            a(f"global_load_dwordx4 v[{W+16*b+4*i}:{W+16*b+4*i+3}], v{(59, 13)[b]}, s[28:29] offset:{1024*i} sc1")
    a(f"s_waitcnt vmcnt(8)")
    check(range(16, 32, 2), 0, 58)
    check(range(17, 32, 2), 0, 56)
    orred(list(range(16, 32, 2)), 60)
    a("v_and_b32 v60, 0xffff, v60")
    orred(list(range(17, 32, 2)), 40)
    a(f"s_waitcnt vmcnt(4)")
    check(range(W, W + 16), 0, 56)
    a(f"s_waitcnt vmcnt(0)")
    check(range(W + 16, W + 32), 0, 56)
    orred([40] + list(range(W, W + 32)), 40)
    a(f"""
v_and_b32 v40, 0xff, v40
v_or_b32 v40, v40, v60
v_cmp_ne_u32 vcc, 0, v40
s_cbranch_vccz L_POLL1_OK
s_sub_u32 s49, s49, 1
s_cbranch_scc0 L_POLL1
L_POLL1_OK:
v_max3_f32 v32, v16, v18, v20
v_max3_f32 v33, v24, v26, v28
v_max_f32 v32, v32, v22
v_max_f32 v33, v33, v30
s_nop 1
v_permlane32_swap_b32 v32, v33
v_max_f32 v32, v32, v33
v_mov_b32 v33, v32
s_nop 1
v_permlane16_swap_b32 v32, v33
v_max_f32 v32, v32, v33
s_nop 1
v_max_f32_dpp v32, v32, v32 row_ror:8 row_mask:0xf bank_mask:0xf
s_nop 0
v_readlane_b32 s38, v32, 0
v_readlane_b32 s39, v32, 32
s_nop 0""")
    for k in range(8):
        a(f"v_subrev_f32 v{16+2*k}, s{38+k//4}, v{16+2*k}")
    for k in range(8):
        a(f"v_mul_f32 v{16+2*k}, s46, v{16+2*k}")
    for k in range(8):
        a(f"v_exp_f32 v{16+2*k}, v{16+2*k}")
    for b in range(2):
        o = W + 16 * b; m = 16 + 8 * b
        a(f"v_mul_f32 v{40+b}, v{m}, v{m+1}")
        for h in range(2):
            a(f"v_pk_mul_f32 v[{32+4*b+2*h}:{33+4*b+2*h}], v[{o+2*h}:{o+2*h+1}], v[{m}:{m+1}] op_sel_hi:[1,0]")
        for i in range(1, 4):
            a(f"v_fma_f32 v{40+b}, v{m+2*i}, v{m+2*i+1}, v{40+b}")
            for h in range(2):
                a(f"v_pk_fma_f32 v[{32+4*b+2*h}:{33+4*b+2*h}], v[{o+4*i+2*h}:{o+4*i+2*h+1}], v[{m+2*i}:{m+2*i+1}], v[{32+4*b+2*h}:{33+4*b+2*h}] op_sel_hi:[1,0,1]")
    a("s_nop 0\nv_permlane32_swap_b32 v40, v41")
    for k in range(4):
        a(f"v_permlane32_swap_b32 v{32+k}, v{36+k}")
    a("v_add_f32 v40, v40, v41")
    for k in range(4):
        a(f"v_add_f32 v{32+k}, v{32+k}, v{36+k}")
    a(f"""
v_mov_b32 v41, v40
s_nop 0
v_permlane16_swap_b32 v32, v34
v_permlane16_swap_b32 v33, v35
v_permlane16_swap_b32 v40, v41
v_add_f32 v32, v32, v34
v_add_f32 v33, v33, v35
v_add_f32 v40, v40, v41
v_add_f32_dpp v32, v32, v32 row_ror:8 row_mask:0xf bank_mask:0xf
v_add_f32_dpp v33, v33, v33 row_ror:8 row_mask:0xf bank_mask:0xf
v_add_f32_dpp v40, v40, v40 row_ror:8 row_mask:0xf bank_mask:0xf
v_rcp_f32 v40, v40
s_nop 0
v_mul_f32 v32, v32, v40
v_mul_f32 v33, v33, v40
v_cvt_pk_bf16_f32 v32, v32, v33
v_and_b32 v33, s45, v32
v_lshlrev_b32 v32, 16, v32
ds_write2_b32 v63, v32, v33 offset0:0 offset1:2
s_waitcnt lgkmcnt(0)
L_HOP1_DONE:
s_barrier""")
    stamp(7)
    for i in range(4):
        a(f"ds_read_b128 v[{X+4*i}:{X+4*i+3}], v10 offset:{OV+16*i}")
    a(f"""
s_waitcnt lgkmcnt(0)
s_branch L_FMA
L_FINAL:
v_add_f32 v{W}, v{W}, v5
v_cvt_pk_bf16_f32 v{W}, v{W}, v{W}
s_mov_b32 exec_lo, 0x000f000f
s_mov_b32 exec_hi, 0x000f000f
global_store_short v8, v{W}, s[24:25]
s_cmp_lg_u32 s2, 0
s_cbranch_scc1 {'L_STAMP' if stamps else 'L_END'}
s_mov_b64 exec, 1
v_mov_b32 v1, {EP}
v_mov_b32 v2, s59
global_store_dword v1, v2, s[28:29] sc1""")
    if stamps:
        a("L_STAMP:\ns_cmp_lg_u32 s3, 0\ns_cbranch_scc1 L_END")
        stamp(8)
        a(f"""
s_mov_b64 exec, 1
s_mul_i32 s38, s2, {NST*8}
s_add_u32 s38, s38, {128 << 20}
v_mov_b32 v1, s38
s_waitcnt lgkmcnt(0)""")
        for k in range(9):
            a(f"v_mov_b32 v2, s{64+2*k}\nv_mov_b32 v3, s{65+2*k}\nglobal_store_dwordx2 v1, v[2:3], s[28:29] offset:{8*k}\ns_nop 1")
    a("L_END:\ns_endpgm")
    return wrap(a.text(), 256, 512, LDS_TOTAL, vgpr=224)

if __name__ == '__main__':
    open('k3.s', 'w').write(gen())
    open('k3s.s', 'w').write(gen(stamps=True))
    for n, p in dict(def_='', sc1='sc1', sc01='sc0 sc1', sc1nt='sc1 nt', sc01nt='sc0 sc1 nt', sc0='sc0').items():
        open('k3_%s.s' % n, 'w').write(gen(pol=p, wpol=p))
```
